```python
import torch

def _softmax(x, axis=-1):
    return torch.softmax(x, dim=axis)
def _gelu(x):
    return torch.nn.functional.gelu(x, approximate="tanh")
def _silu(x):
    return torch.nn.functional.silu(x)
def _sigmoid(x):
    return torch.sigmoid(x)
def _layernorm(x, axis=-1, eps=1e-5):
    m = x.mean(dim=axis, keepdim=True)
    v = x.var(dim=axis, keepdim=True, unbiased=False)
    return (x - m) / torch.sqrt(v + eps)
def _scatter_add(tgt, idx, src, axis=0):
    return tgt.clone().index_add_(axis, idx, src)
def _segment_sum(src, seg, n):
    out = torch.zeros((n,) + src.shape[1:], dtype=src.dtype)
    return out.index_add_(0, seg, src)
def _pad(x, pw):
    flat = tuple(v for pair in reversed(pw) for v in pair)
    return torch.nn.functional.pad(x, flat)

kernel_name = 'gather_scatter__cheap_equivariant_egnn__graph'

def setup_inputs():

    _w = (lambda a: (lambda t: t.to(torch.bfloat16) if t.is_floating_point() else t)(torch.as_tensor(a)))
    N, deg, D, De = 50000, 16, 64, max(16, 1)
    E = N * deg
    return {
        "h": _w((lambda *s: torch.randn(*s, dtype=torch.bfloat16) * 0.2)(N, D)),
        "pos": _w((lambda *s: torch.randn(*s, dtype=torch.bfloat16) * 0.8)(N, 3)),
        "e_attr": _w((lambda *s: torch.randn(*s, dtype=torch.bfloat16) * 0.8)(E, De)),
        "src": _w((lambda lo, hi, *s: torch.randint(lo, hi, s))(0, N, E).to(torch.int64)),
        "dst": _w((lambda lo, hi, *s: torch.randint(lo, hi, s))(0, N, E).to(torch.int64)),
        "w_e": _w(0.1 * (lambda *s: torch.randn(*s, dtype=torch.bfloat16) * 0.8)(2 * D + 1 + De, D)),
        "w_x": _w(0.1 * (lambda *s: torch.randn(*s, dtype=torch.bfloat16) * 0.2)(D, 1)),
        "w_h": _w(0.1 * (lambda *s: torch.randn(*s, dtype=torch.bfloat16) * 0.2)(2 * D, D)),
    }

def reference(h, pos, e_attr, src, dst, w_e, w_x, w_h):
    N, D = h.shape[0], h.shape[1]
    diff = pos[dst] - pos[src]
    dist2 = torch.sum(diff * diff, axis=-1, keepdims=True)
    e_in = torch.concatenate([h[dst], h[src], dist2, e_attr], axis=-1)
    m_ij = _silu(e_in @ w_e)
    coord_scale = m_ij @ w_x
    pos_new = pos + _segment_sum(diff * coord_scale, dst, N)
    m_i = _segment_sum(m_ij, dst, N)
    h_new = h + _silu(torch.concatenate([h, m_i], axis=-1) @ w_h)
    return h_new, pos_new
```

```python
import sys

N = 50000
E = 800000
NCH = 256
CH = E // NCH
GS = 25
NG = N // GS
CAP = 512

WS_REC = 0
WS_TAB = 0x800000
WS_WF = 0xC00000
WS_SIZE = 0x1000000

L_LIST = 0
L_HROW = (CAP + 64) * 8
HSTR = 144
L_OH = L_HROW + 33 * HSTR
OSTR = 80
L_PACC = L_OH + 33 * OSTR
L_TOTAL = L_PACC + 33 * 16
assert L_OH % 16 == 0 and L_PACC % 16 == 0

out = []
def A(s=""):
    out.append(s)

def vr(b, n=1):
    return f"v{b}" if n == 1 else f"v[{b}:{b+n-1}]"
def sr(b, n=1):
    return f"s{b}" if n == 1 else f"s[{b}:{b+n-1}]"

HEADER = open(sys.argv[1]).read() if len(sys.argv) > 1 else ""

def srd(d, b, nbytes):
    A(f"  s_mov_b32 s{d}, s{b}")
    A(f"  s_and_b32 s{d+1}, s{b+1}, 0xffff")
    A(f"  s_mov_b32 s{d+2}, {nbytes}")
    A(f"  s_mov_b32 s{d+3}, 0x00020000")

def wave_scan(v):
    for sh in (1, 2, 4, 8):
        A("  s_nop 1")
        A(f"  v_add_u32_dpp v{v}, v{v}, v{v} row_shr:{sh} row_mask:0xf bank_mask:0xf")
    A("  s_nop 1")
    A(f"  v_add_u32_dpp v{v}, v{v}, v{v} row_bcast:15 row_mask:0xa bank_mask:0xf")
    A("  s_nop 1")
    A(f"  v_add_u32_dpp v{v}, v{v}, v{v} row_bcast:31 row_mask:0xc bank_mask:0xf")
    A("  s_nop 1")

def k_sort():
    A(".globl egnn_sort_kernel")
    A(".p2align 8")
    A(".type egnn_sort_kernel,@function")
    A("egnn_sort_kernel:")
    A(f"  s_cmp_ge_u32 s2, {NCH}")
    A("  s_cbranch_scc1 K1_END")
    A("  s_load_dwordx4 s[4:7], s[0:1], 24")
    A("  s_load_dwordx2 s[8:9], s[0:1], 40")
    A("  s_load_dwordx2 s[10:11], s[0:1], 56")
    A("  s_load_dwordx2 s[12:13], s[0:1], 80")
    A("  v_lshlrev_b32 v1, 3, v0")
    A("  v_mov_b32 v2, 0")
    A("  v_mov_b32 v3, 0")
    A("  ds_write_b64 v1, v[2:3]")
    A(f"  s_mul_i32 s3, s2, {CH}")
    A("  s_movk_i32 s28, 4096")
    A("  s_movk_i32 s29, 8192")
    A("  s_movk_i32 s30, 12288")
    A("  s_mov_b32 s31, 0x51EB851F")
    A("  s_waitcnt lgkmcnt(0)")
    srd(16, 4, E * 4)
    srd(20, 6, E * 4)
    srd(24, 12, WS_SIZE)
    A("  v_add_u32 v4, s3, v0")
    A("  v_lshlrev_b32 v5, 2, v4")
    so = ["0", "s28", "s29", "s30"]
    for k in range(4):
        A(f"  buffer_load_dword v{10+k}, v5, s[20:23], {so[k]} offen")
    for k in range(4):
        A(f"  buffer_load_dword v{14+k}, v5, s[16:19], {so[k]} offen")
    A("  v_mov_b32 v6, 1")
    A("  s_barrier")
    A("  s_waitcnt vmcnt(4)")
    for k in range(4):
        A(f"  v_mul_hi_u32 v{18+k}, v{10+k}, s31")
    for k in range(4):
        A(f"  v_lshrrev_b32 v{18+k}, 3, v{18+k}")
    for k in range(4):
        A(f"  v_mul_u32_u24 v{22+k}, {GS}, v{18+k}")
    for k in range(4):
        A(f"  v_sub_u32 v{22+k}, v{10+k}, v{22+k}")
    for k in range(4):
        A(f"  v_lshlrev_b32 v{18+k}, 2, v{18+k}")
    for k in range(3):
        A(f"  ds_add_rtn_u32 v{26+k}, v{18+k}, v6")
    A(f"  v_cmp_gt_u32 vcc, {CH - 3072}, v0")
    A("  s_and_saveexec_b64 s[32:33], vcc")
    A("  s_cbranch_execz K1_A")
    A("  ds_add_rtn_u32 v29, v21, v6")
    A("K1_A:")
    A("  s_mov_b64 exec, s[32:33]")
    A("  s_waitcnt lgkmcnt(0)")
    A("  s_barrier")
    A("  ds_read_b64 v[30:31], v1")
    A("  s_waitcnt lgkmcnt(0)")
    A("  v_add_u32 v32, v30, v31")
    A("  v_mov_b32 v33, v32")
    wave_scan(33)
    A("  v_lshrrev_b32 v34, 6, v0")
    A("  v_lshlrev_b32 v35, 2, v34")
    A("  v_and_b32 v36, 63, v0")
    A("  v_cmp_eq_u32 vcc, 63, v36")
    A("  s_and_saveexec_b64 s[32:33], vcc")
    A("  ds_write_b32 v35, v33 offset:8192")
    A("  s_mov_b64 exec, s[32:33]")
    A("  s_waitcnt lgkmcnt(0)")
    A("  s_barrier")
    A("  v_and_b32 v37, 15, v0")
    A("  v_lshlrev_b32 v38, 2, v37")
    A("  ds_read_b32 v39, v38 offset:8192")
    A("  v_cmp_lt_u32 vcc, v37, v34")
    A("  s_waitcnt lgkmcnt(0)")
    A("  v_cndmask_b32 v39, 0, v39, vcc")
    for sh in (1, 2, 4, 8):
        A("  s_nop 1")
        A(f"  v_add_u32_dpp v39, v39, v39 row_shr:{sh} row_mask:0xf bank_mask:0xf")
    A("  s_nop 1")
    A("  v_readlane_b32 s34, v39, 15")
    A("  v_sub_u32 v40, v33, v32")
    A("  s_nop 1")
    A("  v_add_u32 v40, s34, v40")
    A("  v_add_u32 v41, v40, v30")
    A("  ds_write_b64 v1, v[40:41]")
    A("  v_lshl_or_b32 v42, v30, 16, v40")
    A("  v_lshl_or_b32 v43, v31, 16, v41")
    A(f"  s_mul_i32 s35, s2, {NG*4}")
    A(f"  s_add_u32 s35, s35, {WS_TAB}")
    A(f"  v_cmp_gt_u32 vcc, {NG//2}, v0")
    A("  s_and_saveexec_b64 s[32:33], vcc")
    A("  s_cbranch_execz K1_B")
    A("  buffer_store_dwordx2 v[42:43], v1, s[24:27], s35 offen")
    A("K1_B:")
    A("  s_mov_b64 exec, s[32:33]")
    A("  s_waitcnt lgkmcnt(0)")
    A("  s_barrier")
    for k in range(4):
        A(f"  ds_read_b32 v{44+k}, v{18+k}")
    A("  s_waitcnt vmcnt(0) lgkmcnt(0)")
    A("  s_lshl_b32 s36, s3, 3")
    for k in range(4):
        A(f"  v_add_u32 v{44+k}, v{44+k}, v{26+k}")
        A(f"  v_lshlrev_b32 v{44+k}, 3, v{44+k}")
        A(f"  v_add_u32 v{48+2*k}, {1024*k}, v4")
        A(f"  v_lshl_or_b32 v{49+2*k}, v{22+k}, 16, v{14+k}")
    for k in range(3):
        A(f"  buffer_store_dwordx2 v[{48+2*k}:{49+2*k}], v{44+k}, s[24:27], s36 offen")
    A(f"  v_cmp_gt_u32 vcc, {CH - 3072}, v0")
    A("  s_and_saveexec_b64 s[32:33], vcc")
    A("  s_cbranch_execz K1_C")
    A("  buffer_store_dwordx2 v[54:55], v47, s[24:27], s36 offen")
    A("K1_C:")
    A("  s_mov_b64 exec, s[32:33]")
    A("  s_cmp_ge_u32 s2, 36")
    A("  s_cbranch_scc1 K1_END")
    A("  v_readfirstlane_b32 s37, v34")
    A("  s_nop 3")
    A("  s_cmp_lg_u32 s37, 0")
    A("  s_cbranch_scc1 K1_END")
    A("  s_cmp_ge_u32 s2, 20")
    A("  s_cbranch_scc1 K1_WH")
    srd(44, 8, 145 * 128)
    A("  s_lshr_b32 s38, s2, 1")
    A("  s_lshl_b32 s40, s38, 4")
    A("  s_mov_b32 s41, 8")
    A("  s_mov_b32 s42, 4")
    A("  s_mov_b32 s43, 1")
    A("  s_cmp_lt_u32 s38, 8")
    A("  s_cbranch_scc1 K1_WGO")
    A("  s_movk_i32 s40, 129")
    A("  s_cmp_eq_u32 s38, 8")
    A("  s_cbranch_scc1 K1_WGO")
    A("  s_movk_i32 s40, 128")
    A("  s_movk_i32 s41, 4096")
    A("  s_movk_i32 s42, 4096")
    A("  s_movk_i32 s43, 4096")
    A("  s_branch K1_WGO")
    A("K1_WH:")
    srd(44, 10, 128 * 128)
    A("  s_sub_u32 s38, s2, 20")
    A("  s_lshr_b32 s38, s38, 1")
    A("  s_lshl_b32 s40, s38, 4")
    A("  s_mov_b32 s41, 8")
    A("  s_mov_b32 s42, 4")
    A("  s_mov_b32 s43, 1")
    A("  s_cmp_lt_u32 s38, 4")
    A("  s_cbranch_scc1 K1_WGO")
    A("  s_mov_b32 s41, 4")
    A("  s_mov_b32 s42, 8")
    A("K1_WGO:")
    A("  v_lshrrev_b32 v60, 5, v0")
    A("  v_mul_lo_u32 v60, v60, s41")
    A("  v_add_u32 v60, s40, v60")
    A("  v_lshlrev_b32 v60, 7, v60")
    A("  v_and_b32 v61, 31, v0")
    A("  s_and_b32 s39, s2, 1")
    A("  s_lshl_b32 s39, s39, 5")
    A("  v_add_u32 v61, s39, v61")
    A("  v_lshl_add_u32 v60, v61, 1, v60")
    for j in range(8):
        A(f"  s_mul_i32 s48, s42, {(j>>2)*128}")
        A(f"  s_mul_i32 s49, s43, {(j&3)*128}")
        A(f"  s_add_u32 s{50+j}, s48, s49")
    for j in range(8):
        A(f"  buffer_load_ushort v{62+j}, v60, s[44:47], s{50+j} offen")
    A("  s_waitcnt vmcnt(0)")
    for p in range(4):
        A(f"  v_lshl_or_b32 v{72+p}, v{63+2*p}, 16, v{62+2*p}")
    A("  v_lshlrev_b32 v61, 4, v0")
    A("  s_lshl_b32 s48, s2, 10")
    A(f"  s_add_u32 s48, s48, {WS_WF}")
    A("  buffer_store_dwordx4 v[72:75], v61, s[24:27], s48 offen")
    A("K1_END:")
    A("  s_endpgm")

V_HH16, V_OHW, V_OHR, V_BP0, V_BP1, V_LA, V_LB = 1, 2, 3, 4, 5, 6, 7
V_WX0, V_WX1 = 8, 10
V_ONE, V_ZERO = 12, 13
V_W = 16
V_ACC = 96
V_D1 = 128
V_MP = 160
V_T = 176
BUF = [dict(hs=192, ea=208, ps=212, pd=214, ent=216), dict(hs=218, ea=234, ps=238, pd=240, ent=242)]
V_D2 = 244
V_TMP = 248

S_H, S_POS, S_EA, S_WS, S_OUT, S_WXS = 16, 20, 24, 28, 32, 36
S_NB, S_T, S_WIN, S_N, S_NT, S_TC = 40, 41, 42, 43, 44, 45
S_NL2E, S_ONE2 = 46, 48
S_HIM, S_B1M, S_B0M = 54, 56, 58
S_MASKHI = 60

def load_tile(b):
    B = BUF[b]
    A(f"  ds_read_b64 {vr(B['ent'],2)}, v{V_LA}")
    A(f"  v_add_u32 v{V_LA}, 256, v{V_LA}")
    A("  s_waitcnt lgkmcnt(0)")
    t0, t1, t2 = V_TMP, V_TMP + 1, V_TMP + 2
    A(f"  v_and_b32 v{t0}, 0xffff, v{B['ent']+1}")
    A(f"  v_lshl_add_u32 v{t1}, v{t0}, 7, v{V_HH16}")
    for s in range(4):
        A(f"  buffer_load_dwordx4 {vr(B['hs']+4*s,4)}, v{t1}, {sr(S_H,4)}, 0 offen offset:{32*s}")
    A(f"  v_lshl_add_u32 v{t2}, v{B['ent']}, 5, v{V_HH16}")
    A(f"  buffer_load_dwordx4 {vr(B['ea'],4)}, v{t2}, {sr(S_EA,4)}, 0 offen")
    A(f"  v_mul_u32_u24 v{t0}, 6, v{t0}")
    A(f"  v_and_b32 v{t0}, -4, v{t0}")
    A(f"  buffer_load_dwordx2 {vr(B['ps'],2)}, v{t0}, {sr(S_POS,4)}, 0 offen")
    A(f"  v_lshrrev_b32 v{t1}, 16, v{B['ent']+1}")
    A(f"  v_add_u32 v{B['ent']}, s{S_NB}, v{t1}")
    A(f"  v_mul_u32_u24 v{t2}, 6, v{B['ent']}")
    A(f"  v_and_b32 v{t2}, -4, v{t2}")
    A(f"  buffer_load_dwordx2 {vr(B['pd'],2)}, v{t2}, {sr(S_POS,4)}, 0 offen")

def silu_pairs(base, npairs, post):
    for i0 in range(0, npairs, 2):
        idx = [i0, i0 + 1]
        tp = {i0: V_TMP, i0 + 1: V_TMP + 4}
        for i in idx:
            r = base + 2 * i
            A(f"  v_cvt_pk_bf16_f32 v{tp[i]}, v{r}, v{r+1}")
        for i in idx:
            r = base + 2 * i
            A(f"  v_lshlrev_b32 v{r}, 16, v{tp[i]}")
            A(f"  v_and_b32 v{r+1}, s{S_MASKHI}, v{tp[i]}")
        for i in idx:
            r = base + 2 * i
            A(f"  v_pk_mul_f32 {vr(tp[i]+2,2)}, {vr(r,2)}, {sr(S_NL2E,2)}")
        for i in idx:
            A(f"  v_exp_f32 v{tp[i]+2}, v{tp[i]+2}")
            A(f"  v_exp_f32 v{tp[i]+3}, v{tp[i]+3}")
        A("  s_nop 0")
        for i in idx:
            A(f"  v_pk_add_f32 {vr(tp[i]+2,2)}, {vr(tp[i]+2,2)}, {sr(S_ONE2,2)}")
        for i in idx:
            A(f"  v_rcp_f32 v{tp[i]+2}, v{tp[i]+2}")
            A(f"  v_rcp_f32 v{tp[i]+3}, v{tp[i]+3}")
        A("  s_nop 0")
        for i in idx:
            r = base + 2 * i
            A(f"  v_pk_mul_f32 {vr(r,2)}, {vr(r,2)}, {vr(tp[i]+2,2)}")
        for i in idx:
            post(i, base + 2 * i)

def compute_tile(b):
    B = BUF[b]
    m = V_MP
    A(f"  v_lshrrev_b32 v{m}, 16, v{B['ent']+1}")
    A(f"  v_mul_u32_u24 v{m+1}, {HSTR}, v{m}")
    A(f"  v_add_u32 v{m+1}, v{m+1}, v{V_HH16}")
    for s in range(4):
        A(f"  ds_read_b128 {vr(V_T+4*s,4)}, v{m+1} offset:{L_HROW+32*s}")
    A(f"  v_mul_u32_u24 v14, {OSTR}, v{m}")
    A(f"  v_add_u32 v14, v14, v{V_OHW}")
    A(f"  v_lshlrev_b32 v15, 4, v{m}")
    A(f"  ds_write_b16 v14, v{V_ONE}")
    A("  s_waitcnt vmcnt(7)")
    A(f"  v_and_b32 v{m}, 1, v{B['ent']+1}")
    A(f"  v_lshlrev_b32 v{m}, 4, v{m}")
    A(f"  v_and_b32 v{m+1}, 1, v{B['ent']}")
    A(f"  v_lshlrev_b32 v{m+1}, 4, v{m+1}")
    A(f"  v_lshrrev_b64 {vr(m+2,2)}, v{m}, {vr(B['ps'],2)}")
    A(f"  v_lshrrev_b64 {vr(m+4,2)}, v{m+1}, {vr(B['pd'],2)}")
    A(f"  v_lshlrev_b32 v{m+6}, 16, v{m+2}")
    A(f"  v_and_b32 v{m+7}, s{S_MASKHI}, v{m+2}")
    A(f"  v_lshlrev_b32 v{m+8}, 16, v{m+3}")
    A(f"  v_lshlrev_b32 v{m+9}, 16, v{m+4}")
    A(f"  v_and_b32 v{m+10}, s{S_MASKHI}, v{m+4}")
    A(f"  v_lshlrev_b32 v{m+11}, 16, v{m+5}")
    for c in range(3):
        A(f"  v_sub_f32 v{m+6+c}, v{m+9+c}, v{m+6+c}")
    A(f"  v_cvt_pk_bf16_f32 v{m}, v{m+6}, v{m+7}")
    A(f"  v_cvt_pk_bf16_f32 v{m+1}, v{m+8}, v{m+8}")
    df = [B['ps'], B['ps'] + 1, B['pd']]
    A(f"  v_lshlrev_b32 v{df[0]}, 16, v{m}")
    A(f"  v_and_b32 v{df[1]}, s{S_MASKHI}, v{m}")
    A(f"  v_lshlrev_b32 v{df[2]}, 16, v{m+1}")
    for c in range(3):
        A(f"  v_mul_f32 v{m+6+c}, v{df[c]}, v{df[c]}")
    A(f"  v_cvt_pk_bf16_f32 v{m}, v{m+6}, v{m+7}")
    A(f"  v_cvt_pk_bf16_f32 v{m+1}, v{m+8}, v{m+8}")
    A(f"  v_lshlrev_b32 v{m+6}, 16, v{m}")
    A(f"  v_and_b32 v{m+7}, s{S_MASKHI}, v{m}")
    A(f"  v_lshlrev_b32 v{m+8}, 16, v{m+1}")
    A(f"  v_add_f32 v{m+6}, v{m+6}, v{m+7}")
    A(f"  v_add_f32 v{m+6}, v{m+6}, v{m+8}")
    A(f"  v_cvt_pk_bf16_f32 v{m}, v{m+6}, v{V_ZERO}")
    A(f"  v_cndmask_b32_e64 v{V_D2}, v{m}, v{V_ZERO}, {sr(S_HIM,2)}")
    A("  s_waitcnt lgkmcnt(0)")
    aops = [vr(V_T + 4 * s, 4) for s in range(4)] + [vr(B['hs'] + 4 * s, 4) for s in range(4)] + [vr(B['ea'], 4), vr(V_D2, 4)]
    for ks in range(10):
        for nt in range(2):
            d = vr(V_D1 + 16 * nt, 16)
            c = "0" if ks == 0 else d
            A(f"  v_mfma_f32_32x32x16_bf16 {d}, {aops[ks]}, {vr(V_W+4*(2*ks+nt),4)}, {c}")
    A("  s_nop 7")
    A("  s_nop 7")
    for nt in range(2):
        def post(i, r, nt=nt):
            wx = V_WX0 if nt == 0 else V_WX1
            if nt == 0:
                A(f"  v_pk_mul_f32 {vr(V_T+2*i,2)}, {vr(r,2)}, {vr(wx,2)}")
            else:
                A(f"  v_pk_fma_f32 {vr(V_T+2*i,2)}, {vr(r,2)}, {vr(wx,2)}, {vr(V_T+2*i,2)}")
            A(f"  v_cvt_pk_bf16_f32 v{V_MP+8*nt+i}, v{r}, v{r+1}")
        silu_pairs(V_D1 + 16 * nt, 8, post)
    A(f"  ds_read_b128 {vr(V_D1,4)}, v{V_OHR}")
    A(f"  ds_read_b128 {vr(V_D1+4,4)}, v{V_OHR} offset:32")
    A(f"  ds_write_b16 v14, v{V_ZERO}")
    t = V_T
    for r in range(8):
        A(f"  v_add_f32_dpp v{t+r}, v{t+r}, v{t+r} row_mirror row_mask:0xf bank_mask:0x3")
    for r in range(8):
        A(f"  v_add_f32_dpp v{t+r}, v{t+r+8}, v{t+r+8} row_mirror row_mask:0xf bank_mask:0xc")
    for r in range(4):
        A(f"  v_add_f32_dpp v{t+r}, v{t+r}, v{t+r} row_half_mirror row_mask:0xf bank_mask:0x5")
    for r in range(4):
        A(f"  v_add_f32_dpp v{t+r}, v{t+r+4}, v{t+r+4} row_half_mirror row_mask:0xf bank_mask:0xa")
    A("  s_waitcnt lgkmcnt(0)")
    for tt in range(2):
        for mt in range(2):
            d = vr(V_ACC + 16 * mt, 16)
            A(f"  v_mfma_f32_32x32x16_bf16 {d}, {vr(V_MP+8*mt+4*tt,4)}, {vr(V_D1+4*tt,4)}, {d}")
    for r in range(2):
        A(f"  v_cndmask_b32_e64 v{t+4+r}, v{t+r}, v{t+r+2}, {sr(S_B1M,2)}")
        A(f"  v_cndmask_b32_e64 v{t+6+r}, v{t+r+2}, v{t+r}, {sr(S_B1M,2)}")
    A("  s_nop 1")
    for r in range(2):
        A(f"  v_add_f32_dpp v{t+r}, v{t+6+r}, v{t+4+r} quad_perm:[2,3,0,1] row_mask:0xf bank_mask:0xf")
    A("  s_nop 0")
    A(f"  v_cndmask_b32_e64 v{t+4}, v{t}, v{t+1}, {sr(S_B0M,2)}")
    A(f"  v_cndmask_b32_e64 v{t+6}, v{t+1}, v{t}, {sr(S_B0M,2)}")
    A("  s_nop 1")
    A(f"  v_add_f32_dpp v{t}, v{t+6}, v{t+4} quad_perm:[1,0,3,2] row_mask:0xf bank_mask:0xf")
    A("  s_nop 0")
    A(f"  ds_bpermute_b32 v{t+1}, v{V_BP0}, v{t}")
    A(f"  ds_bpermute_b32 v{t+2}, v{V_BP1}, v{t}")
    A("  s_waitcnt lgkmcnt(0)")
    A(f"  v_add_f32 v{t+1}, v{t+1}, v{t+2}")
    A(f"  v_cvt_pk_bf16_f32 v{t+1}, v{t+1}, v{t+1}")
    A(f"  v_lshlrev_b32 v{t+1}, 16, v{t+1}")
    for c in range(3):
        A(f"  v_mul_f32 v{t+2+c}, v{df[c]}, v{t+1}")
    A(f"  v_cvt_pk_bf16_f32 v{t+5}, v{t+2}, v{t+3}")
    A(f"  v_cvt_pk_bf16_f32 v{t+6}, v{t+4}, v{t+4}")
    A(f"  v_lshlrev_b32 v{t+2}, 16, v{t+5}")
    A(f"  v_and_b32 v{t+3}, s{S_MASKHI}, v{t+5}")
    A(f"  v_lshlrev_b32 v{t+4}, 16, v{t+6}")
    A("  s_mov_b32 exec_hi, 0")
    for c in range(3):
        A(f"  ds_add_f32 v15, v{t+2+c} offset:{L_PACC+4*c}")
    A("  s_mov_b32 exec_hi, -1")

def k_main():
    name = "gather_scatter__cheap_equivariant_egnn__graph_kernel"
    A(f".globl {name}")
    A(".p2align 8")
    A(f".type {name},@function")
    A(f"{name}:")
    A(f"  s_cmp_ge_u32 s2, {NG}")
    A("  s_cbranch_scc1 K2_END")
    A("  s_load_dwordx4 s[4:7], s[0:1], 0")
    A("  s_load_dwordx2 s[8:9], s[0:1], 16")
    A("  s_load_dwordx2 s[10:11], s[0:1], 48")
    A("  s_load_dwordx2 s[12:13], s[0:1], 64")
    A("  s_load_dwordx2 s[14:15], s[0:1], 80")
    A("  s_and_b32 s3, s2, 7")
    A(f"  s_mul_i32 s3, s3, {NG//8}")
    A("  s_lshr_b32 s61, s2, 3")
    A("  s_add_u32 s3, s3, s61")
    A(f"  s_mul_i32 s{S_NB}, s3, {GS}")
    A(f"  s_mov_b32 s{S_NL2E}, 0xbfb8aa3b")
    A(f"  s_mov_b32 s{S_NL2E+1}, 0xbfb8aa3b")
    A(f"  s_mov_b32 s{S_ONE2}, 1.0")
    A(f"  s_mov_b32 s{S_ONE2+1}, 1.0")
    A(f"  s_mov_b32 s{S_HIM}, 0")
    A(f"  s_mov_b32 s{S_HIM+1}, -1")
    A(f"  s_mov_b32 s{S_B1M}, 0xcccccccc")
    A(f"  s_mov_b32 s{S_B1M+1}, 0xcccccccc")
    A(f"  s_mov_b32 s{S_B0M}, 0xaaaaaaaa")
    A(f"  s_mov_b32 s{S_B0M+1}, 0xaaaaaaaa")
    A(f"  s_mov_b32 s{S_MASKHI}, 0xffff0000")
    A("  v_and_b32 v14, 31, v0")
    A("  v_lshrrev_b32 v15, 5, v0")
    A(f"  v_lshlrev_b32 v{V_HH16}, 4, v15")
    A("  v_lshrrev_b32 v248, 4, v14")
    A(f"  v_lshlrev_b32 v{V_OHW}, 5, v248")
    A("  v_bfe_u32 v248, v14, 2, 1")
    A(f"  v_lshl_add_u32 v{V_OHW}, v248, 4, v{V_OHW}")
    A("  v_bfe_u32 v248, v14, 3, 1")
    A(f"  v_lshl_add_u32 v{V_OHW}, v248, 3, v{V_OHW}")
    A("  v_and_b32 v248, 3, v14")
    A(f"  v_lshl_add_u32 v{V_OHW}, v248, 1, v{V_OHW}")
    A(f"  v_add_u32 v{V_OHW}, {L_OH}, v{V_OHW}")
    A(f"  v_mul_u32_u24 v{V_OHR}, {OSTR}, v14")
    A(f"  v_add_u32 v{V_OHR}, v{V_OHR}, v{V_HH16}")
    A(f"  v_add_u32 v{V_OHR}, {L_OH}, v{V_OHR}")
    A("  v_bfe_u32 v248, v14, 2, 1")
    A(f"  v_lshlrev_b32 v{V_BP0}, 5, v248")
    A("  v_lshrrev_b32 v248, 3, v14")
    A(f"  v_lshl_add_u32 v{V_BP0}, v248, 2, v{V_BP0}")
    A("  v_and_b32 v248, 3, v14")
    A(f"  v_add_u32 v{V_BP0}, v{V_BP0}, v248")
    A(f"  v_lshlrev_b32 v{V_BP0}, 2, v{V_BP0}")
    A(f"  v_add_u32 v{V_BP1}, 64, v{V_BP0}")
    A(f"  v_lshlrev_b32 v{V_LB}, 3, v14")
    A(f"  v_mov_b32 v{V_ONE}, 0x3f80")
    A(f"  v_mov_b32 v{V_ZERO}, 0")
    for i in range(1, 4):
        A(f"  v_mov_b32 v{V_D2+i}, 0")
    for i in range(32):
        A(f"  v_mov_b32 v{V_ACC+i}, 0")
    A("  s_waitcnt lgkmcnt(0)")
    srd(S_H, 4, N * 128)
    srd(S_POS, 6, N * 6)
    srd(S_EA, 8, E * 32)
    srd(S_WS, 14, WS_SIZE)
    srd(S_OUT, 12, N * 128 + N * 6)
    srd(S_WXS, 10, 128)
    A(f"  v_mul_u32_u24 v249, {NG*4}, v0")
    A("  s_lshl_b32 s61, s3, 2")
    A(f"  s_add_u32 s62, s61, {WS_TAB}")
    for j in range(1, 4):
        A(f"  s_add_u32 s{62+j}, s62, {64*NG*4*j}")
    for j in range(4):
        A(f"  buffer_load_dword v{128+j}, v249, {sr(S_WS,4)}, s{62+j} offen")
    A("  v_lshlrev_b32 v250, 4, v0")
    A(f"  s_lshl_b32 s61, s{S_NB}, 7")
    for i in range(4):
        A(f"  buffer_load_dwordx4 {vr(132+4*i,4)}, v250, {sr(S_H,4)}, s61 offen offset:{1024*i}")
    A("  v_lshlrev_b32 v251, 1, v14")
    A(f"  buffer_load_ushort v{V_WX0}, v251, {sr(S_WXS,4)}, 0 offen")
    A(f"  buffer_load_ushort v{V_WX1}, v251, {sr(S_WXS,4)}, 0 offen offset:64")
    A(f"  s_mov_b32 s61, {WS_WF}")
    for f in range(20):
        if f and f % 4 == 0:
            A("  s_add_u32 s61, s61, 4096")
        A(f"  buffer_load_dwordx4 {vr(V_W+4*f,4)}, v250, {sr(S_WS,4)}, s61 offen offset:{1024*(f%4)}")
    for i in range(4):
        A(f"  v_mov_b32 v{148+i}, 0")
    for i in range(3):
        A(f"  ds_write_b128 v250, v[148:151] offset:{L_OH+1024*i}")
    A(f"  v_cmp_gt_u32 vcc, 6, v0")
    A("  s_and_saveexec_b64 s[66:67], vcc")
    A(f"  ds_write_b128 v250, v[148:151] offset:{L_OH+3072}")
    A("  s_mov_b64 exec, s[66:67]")
    A(f"  v_cmp_gt_u32 vcc, 9, v0")
    A("  s_and_saveexec_b64 s[66:67], vcc")
    A(f"  ds_write_b128 v250, v[148:151] offset:{L_HROW+32*HSTR}")
    A("  s_mov_b64 exec, s[66:67]")
    A("  s_waitcnt vmcnt(26)")
    for j in range(4):
        A(f"  v_lshrrev_b32 v{152+j}, 16, v{128+j}")
        A(f"  v_and_b32 v{160+j}, 0xffff, v{128+j}")
    A(f"  v_mul_u32_u24 v249, {CH}, v0")
    for j in range(4):
        A(f"  v_add_u32 v{160+j}, v{160+j}, v249")
        if j:
            A(f"  v_add_u32 v{160+j}, {64*CH*j}, v{160+j}")
    A("  v_add_u32 v164, v152, v153")
    A("  v_add_u32 v165, v154, v155")
    A("  v_add_u32 v164, v164, v165")
    A("  v_mov_b32 v165, v164")
    wave_scan(165)
    A(f"  v_readlane_b32 s{S_T}, v165, 63")
    A("  v_sub_u32 v156, v165, v164")
    A("  v_add_u32 v157, v156, v152")
    A("  v_add_u32 v158, v157, v153")
    A("  v_add_u32 v159, v158, v154")
    A("  v_lshrrev_b32 v249, 3, v0")
    A(f"  v_mul_u32_u24 v249, {HSTR}, v249")
    A("  v_and_b32 v251, 7, v0")
    A("  v_lshl_add_u32 v249, v251, 4, v249")
    A("  s_waitcnt vmcnt(22)")
    for i in range(4):
        A(f"  ds_write_b128 v249, {vr(132+4*i,4)} offset:{L_HROW+8*HSTR*i}")
    A("  s_waitcnt vmcnt(20)")
    A(f"  v_lshlrev_b32 v{V_WX0}, 16, v{V_WX0}")
    A(f"  v_lshlrev_b32 v{V_WX1}, 16, v{V_WX1}")
    A(f"  v_mov_b32 v{V_WX0+1}, v{V_WX0}")
    A(f"  v_mov_b32 v{V_WX1+1}, v{V_WX1}")
    A(f"  s_mov_b32 s{S_WIN}, 0")
    A(f"  s_cmp_eq_u32 s{S_T}, 0")
    A("  s_cbranch_scc1 K2_EPI")
    A(f"  v_mul_u32_u24 v249, 48, v0")
    A(f"  ds_write_b128 v249, v[152:155] offset:{L_TOTAL}")
    A(f"  ds_write_b128 v249, v[156:159] offset:{L_TOTAL+16}")
    A(f"  ds_write_b128 v249, v[160:163] offset:{L_TOTAL+32}")
    A("K2_ROUND:")
    A(f"  v_mul_u32_u24 v249, 48, v0")
    A(f"  ds_read_b128 v[152:155], v249 offset:{L_TOTAL}")
    A(f"  ds_read_b128 v[156:159], v249 offset:{L_TOTAL+16}")
    A(f"  ds_read_b128 v[160:163], v249 offset:{L_TOTAL+32}")
    A(f"  s_sub_u32 s{S_N}, s{S_T}, s{S_WIN}")
    A(f"  s_min_u32 s{S_N}, s{S_N}, {CAP}")
    A(f"  s_add_u32 s61, s{S_WIN}, {CAP}")
    A("  s_waitcnt lgkmcnt(0)")
    for j in range(4):
        A(f"  v_max_u32 v164, s{S_WIN}, v{156+j}")
        A(f"  v_add_u32 v165, v{156+j}, v{152+j}")
        A(f"  v_min_u32 v165, s61, v165")
        A(f"  v_sub_u32 v166, v164, v{156+j}")
        A(f"  v_add_u32 v166, v166, v{160+j}")
        A(f"  v_subrev_u32 v167, s{S_WIN}, v164")
        A(f"  v_lshlrev_b32 v167, 3, v167")
        A(f"K2_EXP{j}:")
        A("  v_cmp_lt_u32 vcc, v164, v165")
        A(f"  s_cbranch_vccz K2_EXPD{j}")
        A("  s_mov_b64 exec, vcc")
        A(f"  ds_write_b32 v167, v166 offset:{L_LIST}")
        A("  v_add_u32 v164, 1, v164")
        A("  v_add_u32 v166, 1, v166")
        A("  v_add_u32 v167, 8, v167")
        A(f"  s_branch K2_EXP{j}")
        A(f"K2_EXPD{j}:")
        A("  s_mov_b64 exec, -1")
    A("  v_lshlrev_b32 v249, 3, v0")
    for i in range(CAP // 64):
        A(f"  ds_read_b32 v{164+i}, v249 offset:{L_LIST+512*i}")
    A("  s_waitcnt lgkmcnt(0)")
    for i in range(CAP // 64):
        A(f"  v_lshlrev_b32 v{164+i}, 3, v{164+i}")
        A(f"  buffer_load_dwordx2 {vr(176+2*i,2)}, v{164+i}, {sr(S_WS,4)}, 0 offen")
    for i in range(CAP // 64):
        A(f"  s_waitcnt vmcnt({CAP//64-1-i})")
        A(f"  ds_write_b64 v249, {vr(176+2*i,2)} offset:{L_LIST+512*i}")
    A(f"  s_lshl_b32 s61, s{S_N}, 3")
    A("  v_add_u32 v249, s61, v249")
    A("  v_mov_b32 v164, 0")
    A("  v_mov_b32 v165, 0x200000")
    A(f"  ds_write_b64 v249, v[164:165] offset:{L_LIST}")
    A(f"  s_add_u32 s{S_NT}, s{S_N}, 31")
    A(f"  s_lshr_b32 s{S_NT}, s{S_NT}, 5")
    A(f"  s_mov_b32 s{S_TC}, 0")
    A(f"  v_mov_b32 v{V_LA}, v{V_LB}")
    load_tile(0)
    A("K2_LOOP:")
    load_tile(1)
    compute_tile(0)
    A(f"  s_add_u32 s{S_TC}, s{S_TC}, 1")
    A(f"  s_cmp_ge_u32 s{S_TC}, s{S_NT}")
    A("  s_cbranch_scc1 K2_LOOPD")
    load_tile(0)
    compute_tile(1)
    A(f"  s_add_u32 s{S_TC}, s{S_TC}, 1")
    A(f"  s_cmp_lt_u32 s{S_TC}, s{S_NT}")
    A("  s_cbranch_scc1 K2_LOOP")
    A("K2_LOOPD:")
    A("  s_waitcnt vmcnt(0)")
    A(f"  s_add_u32 s{S_WIN}, s{S_WIN}, {CAP}")
    A(f"  s_cmp_lt_u32 s{S_WIN}, s{S_T}")
    A("  s_cbranch_scc1 K2_ROUND")
    A("K2_EPI:")
    A("  s_waitcnt vmcnt(0)")
    A("  v_lshlrev_b32 v250, 4, v0")
    A(f"  s_mov_b32 s61, {WS_WF+20*1024}")
    for f in range(16):
        if f and f % 4 == 0:
            A("  s_add_u32 s61, s61, 4096")
        A(f"  buffer_load_dwordx4 {vr(V_W+4*f,4)}, v250, {sr(S_WS,4)}, s61 offen offset:{1024*(f%4)}")
    A("  v_and_b32 v14, 31, v0")
    A(f"  v_mul_u32_u24 v249, {HSTR}, v14")
    A(f"  v_add_u32 v251, v249, v{V_HH16}")
    for s in range(4):
        A(f"  ds_read_b128 {vr(V_T+4*s,4)}, v251 offset:{L_HROW+32*s}")
    A(f"  v_lshrrev_b32 v252, 1, v{V_HH16}")
    A("  v_add_u32 v252, v249, v252")
    for ot in range(2):
        for q in range(4):
            A(f"  ds_read_b64 {vr(192+8*ot+2*q,2)}, v252 offset:{L_HROW+64*ot+16*q}")
    A("  v_lshlrev_b32 v253, 4, v14")
    A(f"  ds_read_b96 v[218:220], v253 offset:{L_PACC}")
    A(f"  v_add_u32 v230, s{S_NB}, v14")
    A("  v_mul_u32_u24 v231, 6, v230")
    for c in range(3):
        A(f"  buffer_load_ushort v{222+c}, v231, {sr(S_POS,4)}, 0 offen offset:{2*c}")
    for mt in range(2):
        for i in range(8):
            A(f"  v_cvt_pk_bf16_f32 v{V_MP+8*mt+i}, v{V_ACC+16*mt+2*i}, v{V_ACC+16*mt+2*i+1}")
    A("  s_waitcnt vmcnt(3) lgkmcnt(0)")
    bops = [vr(V_T + 4 * s, 4) for s in range(4)] + [vr(V_MP + 4 * s, 4) for s in range(4)]
    for ks in range(8):
        for ot in range(2):
            d = vr(V_D1 + 16 * ot, 16)
            c = "0" if ks == 0 else d
            A(f"  v_mfma_f32_32x32x16_bf16 {d}, {vr(V_W+4*(2*ks+ot),4)}, {bops[ks]}, {c}")
    A("  s_nop 7")
    A("  s_nop 7")
    def post2(i, r):
        A(f"  v_cvt_pk_bf16_f32 v{V_T}, v{r}, v{r+1}")
        A(f"  v_lshlrev_b32 v{r}, 16, v{V_T}")
        A(f"  v_and_b32 v{r+1}, s{S_MASKHI}, v{V_T}")
        A(f"  v_lshlrev_b32 v{V_T+2}, 16, v{192+i}")
        A(f"  v_and_b32 v{V_T+3}, s{S_MASKHI}, v{192+i}")
        A(f"  v_pk_add_f32 {vr(r,2)}, {vr(r,2)}, {vr(V_T+2,2)}")
        A(f"  v_cvt_pk_bf16_f32 v{V_MP+i}, v{r}, v{r+1}")
    silu_pairs(V_D1, 16, post2)
    A(f"  v_cmp_gt_u32 vcc, {GS}, v14")
    A("  s_and_saveexec_b64 s[66:67], vcc")
    A(f"  v_lshrrev_b32 v252, 1, v{V_HH16}")
    A("  v_lshl_add_u32 v252, v230, 7, v252")
    for ot in range(2):
        for q in range(4):
            A(f"  buffer_store_dwordx2 {vr(V_MP+8*ot+2*q,2)}, v252, {sr(S_OUT,4)}, 0 offen offset:{64*ot+16*q}")
    A("  s_waitcnt vmcnt(8)")
    A(f"  v_cvt_pk_bf16_f32 v226, v218, v219")
    A(f"  v_cvt_pk_bf16_f32 v227, v220, v220")
    A(f"  v_lshlrev_b32 v218, 16, v226")
    A(f"  v_and_b32 v219, s{S_MASKHI}, v226")
    A(f"  v_lshlrev_b32 v220, 16, v227")
    for c in range(3):
        A(f"  v_lshlrev_b32 v{222+c}, 16, v{222+c}")
        A(f"  v_add_f32 v{222+c}, v{222+c}, v{218+c}")
        A(f"  v_cvt_pk_bf16_f32 v{222+c}, v{222+c}, v{222+c}")
    A("  v_cmp_gt_u32 vcc, 32, v0")
    A("  s_and_b64 exec, exec, vcc")
    A(f"  s_mov_b32 s61, {N*128}")
    for c in range(3):
        A(f"  buffer_store_short v{222+c}, v231, {sr(S_OUT,4)}, s61 offen offset:{2*c}")
    A("K2_END:")
    A("  s_endpgm")

LDS_MAIN = L_TOTAL + 64 * 48
A(HEADER.rstrip("\n"))
A(f"; @launch kernel=egnn_sort_kernel grid=({NCH},1,1) block=(1024,1,1) lds=8448")
A(f"; @launch kernel=gather_scatter__cheap_equivariant_egnn__graph_kernel grid=({NG},1,1) block=(64,1,1) lds={LDS_MAIN}")
A('.amdgcn_target "amdgcn-amd-amdhsa--gfx950"')
A(".text")
k_sort()
k_main()
A('.section .rodata,"a"')
for nm, nv in (("egnn_sort_kernel", 80), ("gather_scatter__cheap_equivariant_egnn__graph_kernel", 256)):
    A(".p2align 6")
    A(f".amdhsa_kernel {nm}")
    A(f"  .amdhsa_next_free_vgpr {nv}")
    A("  .amdhsa_next_free_sgpr 102")
    A(f"  .amdhsa_accum_offset {nv}")
    A("  .amdhsa_group_segment_fixed_size 0")
    A("  .amdhsa_kernarg_size 88")
    A("  .amdhsa_user_sgpr_count 2")
    A("  .amdhsa_user_sgpr_kernarg_segment_ptr 1")
    A("  .amdhsa_system_sgpr_workgroup_id_x 1")
    A("  .amdhsa_float_denorm_mode_32 3")
    A(".end_amdhsa_kernel")
print("\n".join(out))
```

```python
import sys

N = 50000
E = 800000
NCH = 256
CH = E // NCH
GS = 25
NG = N // GS
CAP = 512

WS_REC = 0
WS_TAB = 0x800000
WS_WF = 0xC00000
WS_LUT = 0xC10000
NWG2 = 250
import os
STAMP = int(os.environ.get("STAMP", "0"))
WS_SIZE = 0x2000000 if STAMP else 0x1000000

L_LIST = 0
L_HROW = (CAP + 64) * 8
HSTR = 144
L_OH = L_HROW + 26 * HSTR
OSTR = 80
L_PACC = L_OH + 26 * OSTR
L_TOTAL = L_PACC + 26 * 16
WA = 10912
assert L_OH % 16 == 0 and L_PACC % 16 == 0 and L_OH + 32 * OSTR <= WA and 3 * WA <= 32768 and 5 * WA <= 65536

out = []
def A(s=""):
    out.append(s)

def vr(b, n=1):
    return f"v{b}" if n == 1 else f"v[{b}:{b+n-1}]"
def sr(b, n=1):
    return f"s{b}" if n == 1 else f"s[{b}:{b+n-1}]"

HEADER = open(sys.argv[1]).read() if len(sys.argv) > 1 else ""

def srd(d, b, nbytes):
    A(f"  s_mov_b32 s{d}, s{b}")
    A(f"  s_and_b32 s{d+1}, s{b+1}, 0xffff")
    A(f"  s_mov_b32 s{d+2}, {nbytes}")
    A(f"  s_mov_b32 s{d+3}, 0x00020000")

def stamp(i, real=False):
    if not STAMP:
        return
    A(f"  s_{'memrealtime' if real else 'memtime'} s[{70+2*i}:{71+2*i}]")
    A("  s_waitcnt lgkmcnt(0)")

FCNT = [0]
def fstamp(k, on):
    if not (STAMP and on):
        return
    FCNT[0] += 1
    A(f"  s_cmp_lg_u32 s45, 4")
    A(f"  s_cbranch_scc1 FS{FCNT[0]}")
    A(f"  s_memtime s[86:87]")
    A("  s_waitcnt lgkmcnt(0)")
    A(f"  s_mov_b32 s{88+k}, s86")
    A(f"FS{FCNT[0]}:")

def wave_scan(v):
    for sh in (1, 2, 4, 8):
        A("  s_nop 1")
        A(f"  v_add_u32_dpp v{v}, v{v}, v{v} row_shr:{sh} row_mask:0xf bank_mask:0xf")
    A("  s_nop 1")
    A(f"  v_add_u32_dpp v{v}, v{v}, v{v} row_bcast:15 row_mask:0xa bank_mask:0xf")
    A("  s_nop 1")
    A(f"  v_add_u32_dpp v{v}, v{v}, v{v} row_bcast:31 row_mask:0xc bank_mask:0xf")
    A("  s_nop 1")

def k_sort():
    A(".globl egnn_sort_kernel")
    A(".p2align 8")
    A(".type egnn_sort_kernel,@function")
    A("egnn_sort_kernel:")
    A(f"  s_cmp_ge_u32 s2, {NCH}")
    A("  s_cbranch_scc1 K1_END")
    A("  s_load_dwordx4 s[4:7], s[0:1], 24")
    A("  s_load_dwordx2 s[8:9], s[0:1], 40")
    A("  s_load_dwordx2 s[10:11], s[0:1], 56")
    A("  s_load_dwordx2 s[12:13], s[0:1], 80")
    A("  v_lshlrev_b32 v1, 3, v0")
    A("  v_mov_b32 v2, 0")
    A("  v_mov_b32 v3, 0")
    A("  ds_write_b64 v1, v[2:3]")
    A(f"  s_mul_i32 s3, s2, {CH}")
    A("  s_movk_i32 s28, 4096")
    A("  s_movk_i32 s29, 8192")
    A("  s_movk_i32 s30, 12288")
    A("  s_mov_b32 s31, 0x51EB851F")
    A("  s_waitcnt lgkmcnt(0)")
    srd(16, 4, E * 4)
    srd(20, 6, E * 4)
    srd(24, 12, WS_SIZE)
    A("  v_add_u32 v4, s3, v0")
    A("  v_lshlrev_b32 v5, 2, v4")
    so = ["0", "s28", "s29", "s30"]
    for k in range(4):
        A(f"  buffer_load_dword v{10+k}, v5, s[20:23], {so[k]} offen")
    for k in range(4):
        A(f"  buffer_load_dword v{14+k}, v5, s[16:19], {so[k]} offen")
    A("  v_mov_b32 v6, 1")
    A("  s_barrier")
    A("  s_waitcnt vmcnt(4)")
    for k in range(4):
        A(f"  v_mul_hi_u32 v{18+k}, v{10+k}, s31")
    for k in range(4):
        A(f"  v_lshrrev_b32 v{18+k}, 3, v{18+k}")
    for k in range(4):
        A(f"  v_mul_u32_u24 v{22+k}, {GS}, v{18+k}")
    for k in range(4):
        A(f"  v_sub_u32 v{22+k}, v{10+k}, v{22+k}")
    for k in range(4):
        A(f"  v_lshlrev_b32 v{18+k}, 2, v{18+k}")
    for k in range(3):
        A(f"  ds_add_rtn_u32 v{26+k}, v{18+k}, v6")
    A(f"  v_cmp_gt_u32 vcc, {CH - 3072}, v0")
    A("  s_and_saveexec_b64 s[32:33], vcc")
    A("  s_cbranch_execz K1_A")
    A("  ds_add_rtn_u32 v29, v21, v6")
    A("K1_A:")
    A("  s_mov_b64 exec, s[32:33]")
    A("  s_waitcnt lgkmcnt(0)")
    A("  s_barrier")
    A("  ds_read_b64 v[30:31], v1")
    A("  s_waitcnt lgkmcnt(0)")
    A("  v_add_u32 v32, v30, v31")
    A("  v_mov_b32 v33, v32")
    wave_scan(33)
    A("  v_lshrrev_b32 v34, 6, v0")
    A("  v_lshlrev_b32 v35, 2, v34")
    A("  v_and_b32 v36, 63, v0")
    A("  v_cmp_eq_u32 vcc, 63, v36")
    A("  s_and_saveexec_b64 s[32:33], vcc")
    A("  ds_write_b32 v35, v33 offset:8192")
    A("  s_mov_b64 exec, s[32:33]")
    A("  s_waitcnt lgkmcnt(0)")
    A("  s_barrier")
    A("  v_and_b32 v37, 15, v0")
    A("  v_lshlrev_b32 v38, 2, v37")
    A("  ds_read_b32 v39, v38 offset:8192")
    A("  v_cmp_lt_u32 vcc, v37, v34")
    A("  s_waitcnt lgkmcnt(0)")
    A("  v_cndmask_b32 v39, 0, v39, vcc")
    for sh in (1, 2, 4, 8):
        A("  s_nop 1")
        A(f"  v_add_u32_dpp v39, v39, v39 row_shr:{sh} row_mask:0xf bank_mask:0xf")
    A("  s_nop 1")
    A("  v_readlane_b32 s34, v39, 15")
    A("  v_sub_u32 v40, v33, v32")
    A("  s_nop 1")
    A("  v_add_u32 v40, s34, v40")
    A("  v_add_u32 v41, v40, v30")
    A("  ds_write_b64 v1, v[40:41]")
    A("  v_lshl_or_b32 v42, v30, 16, v40")
    A("  v_lshl_or_b32 v43, v31, 16, v41")
    A(f"  s_mul_i32 s35, s2, {NG*4}")
    A(f"  s_add_u32 s35, s35, {WS_TAB}")
    A(f"  v_cmp_gt_u32 vcc, {NG//2}, v0")
    A("  s_and_saveexec_b64 s[32:33], vcc")
    A("  s_cbranch_execz K1_B")
    A("  buffer_store_dwordx2 v[42:43], v1, s[24:27], s35 offen")
    A("K1_B:")
    A("  s_mov_b64 exec, s[32:33]")
    A("  s_waitcnt lgkmcnt(0)")
    A("  s_barrier")
    for k in range(4):
        A(f"  ds_read_b32 v{44+k}, v{18+k}")
    A("  s_waitcnt vmcnt(0) lgkmcnt(0)")
    A("  s_lshl_b32 s36, s3, 3")
    for k in range(4):
        A(f"  v_add_u32 v{44+k}, v{44+k}, v{26+k}")
        A(f"  v_lshlrev_b32 v{44+k}, 3, v{44+k}")
        A(f"  v_add_u32 v{48+2*k}, {1024*k}, v4")
        A(f"  v_lshl_or_b32 v{49+2*k}, v{22+k}, 16, v{14+k}")
    for k in range(3):
        A(f"  buffer_store_dwordx2 v[{48+2*k}:{49+2*k}], v{44+k}, s[24:27], s36 offen")
    A(f"  v_cmp_gt_u32 vcc, {CH - 3072}, v0")
    A("  s_and_saveexec_b64 s[32:33], vcc")
    A("  s_cbranch_execz K1_C")
    A("  buffer_store_dwordx2 v[54:55], v47, s[24:27], s36 offen")
    A("K1_C:")
    A("  s_mov_b64 exec, s[32:33]")
    A("  s_cmp_lt_u32 s2, 64")
    A("  s_cbranch_scc1 K1_NOLUT")
    A("  s_cmp_ge_u32 s2, 96")
    A("  s_cbranch_scc1 K1_END")
    A("  s_sub_u32 s37, s2, 64")
    A("  s_lshl_b32 s37, s37, 10")
    A("  v_add_u32 v60, s37, v0")
    A("  v_and_b32 v61, 0x3fff, v60")
    A("  v_lshrrev_b32 v62, 14, v60")
    A("  v_lshl_or_b32 v61, v62, 15, v61")
    A("  v_lshlrev_b32 v61, 16, v61")
    A("  v_mul_f32 v61, 0x42800000, v61")
    A("  v_mul_f32 v62, 0xbfb8aa3b, v61")
    A("  v_exp_f32 v62, v62")
    A("  s_nop 0")
    A("  v_add_f32 v62, 1.0, v62")
    A("  v_rcp_f32 v62, v62")
    A("  s_nop 0")
    A("  v_mul_f32 v61, v61, v62")
    A("  v_cvt_pk_bf16_f32 v61, v61, v61")
    A("  v_lshlrev_b32 v60, 1, v60")
    A(f"  s_mov_b32 s37, {WS_LUT}")
    A("  buffer_store_short v61, v60, s[24:27], s37 offen")
    A("  s_branch K1_END")
    A("K1_NOLUT:")
    A("  s_cmp_ge_u32 s2, 36")
    A("  s_cbranch_scc1 K1_END")
    A("  v_readfirstlane_b32 s37, v34")
    A("  s_nop 3")
    A("  s_cmp_lg_u32 s37, 0")
    A("  s_cbranch_scc1 K1_END")
    A("  s_cmp_ge_u32 s2, 20")
    A("  s_cbranch_scc1 K1_WH")
    srd(44, 8, 145 * 128)
    A("  s_lshr_b32 s38, s2, 1")
    A("  s_lshl_b32 s40, s38, 4")
    A("  s_mov_b32 s41, 8")
    A("  s_mov_b32 s42, 4")
    A("  s_mov_b32 s43, 1")
    A("  s_cmp_lt_u32 s38, 8")
    A("  s_cbranch_scc1 K1_WGO")
    A("  s_movk_i32 s40, 129")
    A("  s_cmp_eq_u32 s38, 8")
    A("  s_cbranch_scc1 K1_WGO")
    A("  s_movk_i32 s40, 128")
    A("  s_movk_i32 s41, 4096")
    A("  s_movk_i32 s42, 4096")
    A("  s_movk_i32 s43, 4096")
    A("  s_branch K1_WGO")
    A("K1_WH:")
    srd(44, 10, 128 * 128)
    A("  s_sub_u32 s38, s2, 20")
    A("  s_lshr_b32 s38, s38, 1")
    A("  s_lshl_b32 s40, s38, 4")
    A("  s_mov_b32 s41, 8")
    A("  s_mov_b32 s42, 4")
    A("  s_mov_b32 s43, 1")
    A("  s_cmp_lt_u32 s38, 4")
    A("  s_cbranch_scc1 K1_WGO")
    A("  s_mov_b32 s41, 4")
    A("  s_mov_b32 s42, 8")
    A("K1_WGO:")
    A("  v_lshrrev_b32 v60, 5, v0")
    A("  v_mul_lo_u32 v60, v60, s41")
    A("  v_add_u32 v60, s40, v60")
    A("  v_lshlrev_b32 v60, 7, v60")
    A("  v_and_b32 v61, 31, v0")
    A("  s_and_b32 s39, s2, 1")
    A("  s_lshl_b32 s39, s39, 5")
    A("  v_add_u32 v61, s39, v61")
    A("  v_lshl_add_u32 v60, v61, 1, v60")
    for j in range(8):
        A(f"  s_mul_i32 s48, s42, {(j>>2)*128}")
        A(f"  s_mul_i32 s49, s43, {(j&3)*128}")
        A(f"  s_add_u32 s{50+j}, s48, s49")
    for j in range(8):
        A(f"  buffer_load_ushort v{62+j}, v60, s[44:47], s{50+j} offen")
    A("  s_waitcnt vmcnt(0)")
    A("  s_cmp_ge_u32 s2, 20")
    A("  s_cbranch_scc1 K1_NOSC")
    for j in range(8):
        A(f"  v_lshlrev_b32 v{62+j}, 16, v{62+j}")
        A(f"  v_mul_f32 v{62+j}, 0x3c800000, v{62+j}")
        A(f"  v_lshrrev_b32 v{62+j}, 16, v{62+j}")
    A("K1_NOSC:")
    for p in range(4):
        A(f"  v_lshl_or_b32 v{72+p}, v{63+2*p}, 16, v{62+2*p}")
    A("  v_lshlrev_b32 v61, 4, v0")
    A("  s_lshl_b32 s48, s2, 10")
    A(f"  s_add_u32 s48, s48, {WS_WF}")
    A("  buffer_store_dwordx4 v[72:75], v61, s[24:27], s48 offen")
    A("K1_END:")
    A("  s_endpgm")

V_HH16, V_OHW, V_OHR, V_BP0, V_UR, V_LA, V_LB = 1, 2, 3, 4, 5, 6, 7
V_WX0, V_WX1, V_HB, V_CHK = 8, 9, 10, 11
V_WL = 15
V_ONE, V_ZERO = 12, 13
V_W = 16
V_PA = 80
V_ACC = 96
L_WSH = 98304 + 5 * WA
V_D1 = 128
V_MP = 160
V_T = 176
BUF = [dict(hs=192, ea=208, ps=212, pd=214, ent=216), dict(hs=218, ea=234, ps=238, pd=240, ent=242)]
V_D2 = 244
V_TMP = 248

S_H, S_POS, S_EA, S_WS, S_OUT, S_WXS = 16, 20, 24, 28, 32, 36
S_NB, S_T, S_WIN, S_N, S_NT, S_TC = 40, 41, 42, 43, 44, 45
S_NL2E, S_ONE2 = 46, 48
S_BASE, S_PERM, S_G = 50, 51, 52
S_HIM, S_B1M, S_B0M = 54, 56, 58
S_MASKHI = 60
EXP = int(os.environ.get("EXP", "0"))
NLUT = int(os.environ.get("NLUT", "8"))

def load_tile(b):
    B = BUF[b]
    A(f"  ds_read_b64 {vr(B['ent'],2)}, v{V_LA}")
    A(f"  v_add_u32 v{V_LA}, 256, v{V_LA}")
    A("  s_waitcnt lgkmcnt(0)")
    t0, t1, t2 = V_TMP, V_TMP + 1, V_TMP + 2
    A(f"  v_and_b32 v{t0}, {'0' if EXP & 4 else '0x3ff' if EXP & 1 else '0xffff'}, v{B['ent']+1}")
    A(f"  v_lshl_add_u32 v{t1}, v{t0}, 7, v{V_HH16}")
    for s in range(4):
        A(f"  buffer_load_dwordx4 {vr(B['hs']+4*s,4)}, v{t1}, {sr(S_H,4)}, 0 offen offset:{32*s}")
    if EXP & 2:
        A(f"  v_and_b32 v{t2}, {'0' if EXP & 8 else '0xfff'}, v{B['ent']}")
        A(f"  v_lshl_add_u32 v{t2}, v{t2}, 5, v{V_HH16}")
    else:
        A(f"  v_lshl_add_u32 v{t2}, v{B['ent']}, 5, v{V_HH16}")
    A(f"  buffer_load_dwordx4 {vr(B['ea'],4)}, v{t2}, {sr(S_EA,4)}, 0 offen")
    A(f"  v_mul_u32_u24 v{t0}, 6, v{t0}")
    A(f"  v_and_b32 v{t0}, -4, v{t0}")
    A(f"  buffer_load_dwordx2 {vr(B['ps'],2)}, v{t0}, {sr(S_POS,4)}, 0 offen")
    A(f"  v_lshrrev_b32 v{t1}, 16, v{B['ent']+1}")
    A(f"  v_add_u32 v{B['ent']}, s{S_NB}, v{t1}")
    A(f"  v_mul_u32_u24 v{t2}, 6, v{B['ent']}")
    A(f"  v_and_b32 v{t2}, -4, v{t2}")
    A(f"  buffer_load_dwordx2 {vr(B['pd'],2)}, v{t2}, {sr(S_POS,4)}, 0 offen")

def silu_pairs(base, npairs, post):
    for i0 in range(0, npairs, 2):
        idx = [i0, i0 + 1]
        tp = {i0: V_TMP, i0 + 1: V_TMP + 4}
        for i in idx:
            r = base + 2 * i
            A(f"  v_cvt_pk_bf16_f32 v{tp[i]}, v{r}, v{r+1}")
        for i in idx:
            r = base + 2 * i
            A(f"  v_lshlrev_b32 v{r}, 16, v{tp[i]}")
            A(f"  v_and_b32 v{r+1}, s{S_MASKHI}, v{tp[i]}")
        for i in idx:
            r = base + 2 * i
            A(f"  v_pk_mul_f32 {vr(tp[i]+2,2)}, {vr(r,2)}, {sr(S_NL2E,2)}")
        for i in idx:
            A(f"  v_exp_f32 v{tp[i]+2}, v{tp[i]+2}")
            A(f"  v_exp_f32 v{tp[i]+3}, v{tp[i]+3}")
        A("  s_nop 0")
        for i in idx:
            A(f"  v_pk_add_f32 {vr(tp[i]+2,2)}, {vr(tp[i]+2,2)}, {sr(S_ONE2,2)}")
        for i in idx:
            A(f"  v_rcp_f32 v{tp[i]+2}, v{tp[i]+2}")
            A(f"  v_rcp_f32 v{tp[i]+3}, v{tp[i]+3}")
        A("  s_nop 0")
        for i in idx:
            r = base + 2 * i
            A(f"  v_pk_mul_f32 {vr(r,2)}, {vr(r,2)}, {vr(tp[i]+2,2)}")
        for i in idx:
            post(i, base + 2 * i)

def silu_from_packed(p, r, t):
    L = []
    L.append(f"  v_lshlrev_b32 v{r}, 16, v{p}")
    L.append(f"  v_and_b32 v{r+1}, s{S_MASKHI}, v{p}")
    L.append(f"  v_mul_f32 v{r}, 0x42800000, v{r}")
    L.append(f"  v_mul_f32 v{r+1}, 0x42800000, v{r+1}")
    L.append(f"  v_mul_f32 v{t}, s{S_NL2E}, v{r}")
    L.append(f"  v_mul_f32 v{t+1}, s{S_NL2E}, v{r+1}")
    L.append(f"  v_exp_f32 v{t}, v{t}")
    L.append(f"  v_exp_f32 v{t+1}, v{t+1}")
    L.append("  s_nop 0")
    L.append(f"  v_add_f32 v{t}, 1.0, v{t}")
    L.append(f"  v_add_f32 v{t+1}, 1.0, v{t+1}")
    L.append(f"  v_rcp_f32 v{t}, v{t}")
    L.append(f"  v_rcp_f32 v{t+1}, v{t+1}")
    L.append("  s_nop 0")
    L.append(f"  v_mul_f32 v{r}, v{r}, v{t}")
    L.append(f"  v_mul_f32 v{r+1}, v{r+1}, v{t+1}")
    L.append(f"  v_cvt_pk_bf16_f32 v{t}, v{r}, v{r+1}")
    L.append(f"  v_lshlrev_b32 v{r}, 16, v{t}")
    L.append(f"  v_and_b32 v{r+1}, s{S_MASKHI}, v{t}")
    return L

SLOW = []

def lut_front(nt, tag):
    L = []
    D = V_D1 + 16 * nt
    P = V_MP + 8 * nt
    for i in range(8):
        L.append(f"  v_cvt_pk_bf16_f32 v{P+i}, v{D+2*i}, v{D+2*i+1}")
    L.append(f"  v_or3_b32 v{V_CHK}, v{P}, v{P+1}, v{P+2}")
    L.append(f"  v_or3_b32 v{V_CHK}, v{V_CHK}, v{P+3}, v{P+4}")
    L.append(f"  v_or3_b32 v{V_CHK}, v{V_CHK}, v{P+5}, v{P+6}")
    L.append(f"  v_or_b32 v{V_CHK}, v{V_CHK}, v{P+7}")
    L.append(f"  v_and_b32 v{V_CHK}, 0x40004000, v{V_CHK}")
    L.append(f"  v_cmp_ne_u32 vcc, 0, v{V_CHK}")
    for i in range(NLUT):
        L.append(f"  v_add_u32_sdwa v{D+2*i}, v{P+i}, v{P+i} dst_sel:DWORD dst_unused:UNUSED_PAD src0_sel:WORD_0 src1_sel:WORD_0")
        L.append(f"  v_add_u32_sdwa v{D+2*i+1}, v{P+i}, v{P+i} dst_sel:DWORD dst_unused:UNUSED_PAD src0_sel:WORD_1 src1_sel:WORD_1")
        L.append(f"  ds_read_u16_d16_hi v{D+2*i}, v{D+2*i}")
        L.append(f"  ds_read_u16_d16_hi v{D+2*i+1}, v{D+2*i+1}")
    for i in range(NLUT, 8):
        L += silu_from_packed(P + i, D + 2 * i, V_TMP + 2 * (i & 1))
    L.append(f"  s_cbranch_vccnz K2_SLOW{tag}")
    L.append(f"K2_BACK{tag}:")
    S = [f"K2_SLOW{tag}:", "  s_waitcnt lgkmcnt(0)"]
    for i in range(NLUT):
        S += silu_from_packed(P + i, D + 2 * i, V_TMP)
    S.append(f"  s_branch K2_BACK{tag}")
    SLOW.extend(S)
    return L

def lut_back(nt):
    L = []
    D = V_D1 + 16 * nt
    P = V_MP + 8 * nt
    for i in range(8):
        for k in range(2):
            r = 2 * i + k
            if nt == 0:
                L.append(f"  v_mul_f32 v{V_T+r}, v{D+r}, v{V_WX0}")
            else:
                L.append(f"  v_fmac_f32 v{V_T+r}, v{D+r}, v{V_WX1}")
        L.append(f"  v_perm_b32 v{P+i}, v{D+2*i+1}, v{D+2*i}, s{S_PERM}")
    return L

def compute_tile(b, tag):
    B = BUF[b]
    m = V_MP
    A(f"  v_lshrrev_b32 v{m}, 16, v{B['ent']+1}")
    A(f"  v_mul_u32_u24 v{m+1}, {HSTR}, v{m}")
    A(f"  v_add_u32 v{m+1}, v{m+1}, v{V_HB}")
    for s in range(4):
        if not EXP & 64:
            A(f"  ds_read_b128 {vr(V_T+4*s,4)}, v{m+1} offset:{L_HROW+32*s}")
    A(f"  v_mul_u32_u24 v14, {OSTR}, v{m}")
    A(f"  v_add_u32 v14, v14, v{V_OHW}")
    A(f"  ds_write_b16 v14, v{V_ONE}")
    A("  s_waitcnt vmcnt(7)")
    fstamp(2, b == 0)
    A(f"  v_and_b32 v{m}, 1, v{B['ent']+1}")
    A(f"  v_lshlrev_b32 v{m}, 4, v{m}")
    A(f"  v_and_b32 v{m+1}, 1, v{B['ent']}")
    A(f"  v_lshlrev_b32 v{m+1}, 4, v{m+1}")
    A(f"  v_lshrrev_b64 {vr(m+2,2)}, v{m}, {vr(B['ps'],2)}")
    A(f"  v_lshrrev_b64 {vr(m+4,2)}, v{m+1}, {vr(B['pd'],2)}")
    A(f"  v_lshlrev_b32 v{m+6}, 16, v{m+2}")
    A(f"  v_and_b32 v{m+7}, s{S_MASKHI}, v{m+2}")
    A(f"  v_lshlrev_b32 v{m+8}, 16, v{m+3}")
    A(f"  v_lshlrev_b32 v{m+9}, 16, v{m+4}")
    A(f"  v_and_b32 v{m+10}, s{S_MASKHI}, v{m+4}")
    A(f"  v_lshlrev_b32 v{m+11}, 16, v{m+5}")
    for c in range(3):
        A(f"  v_sub_f32 v{m+6+c}, v{m+9+c}, v{m+6+c}")
    A(f"  v_cvt_pk_bf16_f32 v{m}, v{m+6}, v{m+7}")
    A(f"  v_cvt_pk_bf16_f32 v{m+1}, v{m+8}, v{m+8}")
    df = [B['ps'], B['ps'] + 1, B['pd']]
    A(f"  v_lshlrev_b32 v{df[0]}, 16, v{m}")
    A(f"  v_and_b32 v{df[1]}, s{S_MASKHI}, v{m}")
    A(f"  v_lshlrev_b32 v{df[2]}, 16, v{m+1}")
    for c in range(3):
        A(f"  v_mul_f32 v{m+6+c}, v{df[c]}, v{df[c]}")
    A(f"  v_cvt_pk_bf16_f32 v{m}, v{m+6}, v{m+7}")
    A(f"  v_cvt_pk_bf16_f32 v{m+1}, v{m+8}, v{m+8}")
    A(f"  v_lshlrev_b32 v{m+6}, 16, v{m}")
    A(f"  v_and_b32 v{m+7}, s{S_MASKHI}, v{m}")
    A(f"  v_lshlrev_b32 v{m+8}, 16, v{m+1}")
    A(f"  v_add_f32 v{m+6}, v{m+6}, v{m+7}")
    A(f"  v_add_f32 v{m+6}, v{m+6}, v{m+8}")
    A(f"  v_cvt_pk_bf16_f32 v{m}, v{m+6}, v{V_ZERO}")
    A(f"  v_cndmask_b32_e64 v{V_D2}, v{m}, v{V_ZERO}, {sr(S_HIM,2)}")
    for f in range(4):
        A(f"  ds_read_b128 {vr(V_MP+4*f,4)}, v{V_WL} offset:{1024*f}")
    A("  s_waitcnt lgkmcnt(0)")
    fstamp(3, b == 0)
    aops = [vr(V_T + 4 * s, 4) for s in range(4)] + [vr(B['hs'] + 4 * s, 4) for s in range(4)] + [vr(B['ea'], 4), vr(V_D2, 4)]
    KORD = [8, 9, 0, 1, 2, 3, 4, 5, 6, 7]
    def mf(q, nt):
        ks = KORD[q]
        d = vr(V_D1 + 16 * nt, 16)
        c = "0" if q == 0 else d
        w = vr(V_MP + 4 * (2 * (ks - 8) + nt), 4) if ks >= 8 else vr(V_W + 4 * (2 * ks + nt), 4)
        return f"  v_mfma_f32_32x32x16_bf16 {d}, {aops[ks]}, {w}, {c}"
    for ks in range(10):
        A(mf(ks, 0))
    F0 = lut_front(0, tag + "a")
    for ks in range(3):
        A(mf(ks, 1))
    rest = 7
    per = (len(F0) + rest - 1) // rest
    pos = 0
    for ks in range(3, 10):
        for l in F0[pos:pos + per]:
            A(l)
        pos += per
        A(mf(ks, 1))
    for l in F0[pos:]:
        A(l)
    A("  s_waitcnt lgkmcnt(0)")
    fstamp(4, b == 0)
    for l in lut_back(0):
        A(l)
    fstamp(5, b == 0)
    for l in lut_front(1, tag + "b"):
        A(l)
    fstamp(6, b == 0)
    A(f"  ds_read_b128 {vr(V_TMP,4)}, v{V_OHR}")
    A(f"  ds_read_b128 {vr(V_TMP+4,4)}, v{V_OHR} offset:32")
    A(f"  ds_write_b16 v14, v{V_ZERO}")
    A("  s_waitcnt lgkmcnt(3)")
    for l in lut_back(1):
        A(l)
    A("  s_waitcnt lgkmcnt(1)")
    fstamp(7, b == 0)
    for tt in range(2):
        for mt in range(2):
            d = vr(V_ACC + 16 * mt, 16)
            A(f"  v_mfma_f32_32x32x16_bf16 {d}, {vr(V_MP+8*mt+4*tt,4)}, {vr(V_TMP+4*tt,4)}, {d}")
    t = V_T
    for r in range(8):
        A(f"  v_add_f32_dpp v{t+r}, v{t+r}, v{t+r} row_mirror row_mask:0xf bank_mask:0x3")
    for r in range(8):
        A(f"  v_add_f32_dpp v{t+r}, v{t+r+8}, v{t+r+8} row_mirror row_mask:0xf bank_mask:0xc")
    for r in range(4):
        A(f"  v_add_f32_dpp v{t+r}, v{t+r}, v{t+r} row_half_mirror row_mask:0xf bank_mask:0x5")
    for r in range(4):
        A(f"  v_add_f32_dpp v{t+r}, v{t+r+4}, v{t+r+4} row_half_mirror row_mask:0xf bank_mask:0xa")
    for r in range(2):
        A(f"  v_cndmask_b32_e64 v{t+4+r}, v{t+r}, v{t+r+2}, {sr(S_B1M,2)}")
        A(f"  v_cndmask_b32_e64 v{t+6+r}, v{t+r+2}, v{t+r}, {sr(S_B1M,2)}")
    A("  s_nop 1")
    for r in range(2):
        A(f"  v_add_f32_dpp v{t+r}, v{t+6+r}, v{t+4+r} quad_perm:[2,3,0,1] row_mask:0xf bank_mask:0xf")
    A("  s_nop 0")
    A(f"  v_cndmask_b32_e64 v{t+4}, v{t}, v{t+1}, {sr(S_B0M,2)}")
    A(f"  v_cndmask_b32_e64 v{t+6}, v{t+1}, v{t}, {sr(S_B0M,2)}")
    A("  s_nop 1")
    A(f"  v_add_f32_dpp v{t}, v{t+6}, v{t+4} quad_perm:[1,0,3,2] row_mask:0xf bank_mask:0xf")
    A("  s_nop 0")
    fstamp(8, b == 0)
    A(f"  ds_bpermute_b32 v{t+1}, v{V_BP0}, v{t}")
    A(f"  ds_bpermute_b32 v{t+2}, v{V_BP0}, v{t} offset:64")
    A("  s_waitcnt lgkmcnt(0)")
    A(f"  v_add_f32 v{t+1}, v{t+1}, v{t+2}")
    A(f"  v_cvt_pk_bf16_f32 v{t+1}, v{t+1}, v{t+1}")
    A(f"  v_lshlrev_b32 v{t+1}, 16, v{t+1}")
    for c in range(3):
        A(f"  v_mul_f32 v{t+2+c}, v{df[c]}, v{t+1}")
    A(f"  v_cvt_pk_bf16_f32 v{t+5}, v{t+2}, v{t+3}")
    A(f"  v_cvt_pk_bf16_f32 v{t+6}, v{t+4}, v{t+4}")
    A("  s_mov_b32 exec_hi, 0")
    A(f"  ds_write_b16 v{V_OHW}, v{t+5} offset:{L_PACC-L_OH}")
    A(f"  ds_write_b16_d16_hi v{V_OHW}, v{t+5} offset:{L_PACC-L_OH+64}")
    A(f"  ds_write_b16 v{V_OHW}, v{t+6} offset:{L_PACC-L_OH+128}")
    A("  s_mov_b32 exec_hi, -1")
    A(f"  ds_read_b128 {vr(t+8,4)}, v{V_UR}")
    A(f"  ds_read_b128 {vr(t+12,4)}, v{V_UR} offset:32")
    A("  s_waitcnt lgkmcnt(0)")
    for tt in range(2):
        A(f"  v_mfma_f32_32x32x16_bf16 {vr(V_PA,16)}, {vr(t+8+4*tt,4)}, {vr(V_TMP+4*tt,4)}, {vr(V_PA,16)}")

def table_loads():
    A(f"  v_mul_u32_u24 v249, {NG*4}, v0")
    A(f"  s_lshl_b32 s61, s{S_G}, 2")
    A(f"  s_add_u32 s62, s61, {WS_TAB}")
    for j in range(1, 4):
        A(f"  s_add_u32 s{62+j}, s62, {64*NG*4*j}")
    for j in range(4):
        A(f"  buffer_load_dword v{128+j}, v249, {sr(S_WS,4)}, s{62+j} offen")

def table_scan():
    for j in range(4):
        A(f"  v_lshrrev_b32 v{152+j}, 16, v{128+j}")
        A(f"  v_and_b32 v{160+j}, 0xffff, v{128+j}")
    A(f"  v_mul_u32_u24 v249, {CH}, v0")
    for j in range(4):
        A(f"  v_add_u32 v{160+j}, v{160+j}, v249")
        if j:
            A(f"  v_add_u32 v{160+j}, {64*CH*j}, v{160+j}")
    A("  v_add_u32 v164, v152, v153")
    A("  v_add_u32 v165, v154, v155")
    A("  v_add_u32 v164, v164, v165")
    A("  v_mov_b32 v165, v164")
    wave_scan(165)
    A(f"  v_readlane_b32 s{S_T}, v165, 63")
    A("  v_sub_u32 v156, v165, v164")
    A("  v_add_u32 v157, v156, v152")
    A("  v_add_u32 v158, v157, v153")
    A("  v_add_u32 v159, v158, v154")

def k_main():
    name = "gather_scatter__cheap_equivariant_egnn__graph_kernel"
    A(f".globl {name}")
    A(".p2align 8")
    A(f".type {name},@function")
    A(f"{name}:")
    A("  s_cmp_ge_u32 s2, 256")
    A("  s_cbranch_scc1 K2_END")
    A("  s_and_b32 s3, s2, 7")
    A("  s_lshl_b32 s3, s3, 5")
    A("  s_lshr_b32 s61, s2, 3")
    A("  s_add_u32 s3, s3, s61")
    A(f"  s_cmp_ge_u32 s3, {NWG2}")
    A("  s_cbranch_scc1 K2_END")
    stamp(0, True)
    stamp(1)
    A("  s_load_dwordx4 s[4:7], s[0:1], 0")
    A("  s_load_dwordx2 s[8:9], s[0:1], 16")
    A("  s_load_dwordx2 s[10:11], s[0:1], 48")
    A("  s_load_dwordx2 s[12:13], s[0:1], 64")
    A("  s_load_dwordx2 s[14:15], s[0:1], 80")
    A("  v_lshrrev_b32 v248, 6, v0")
    A("  v_lshlrev_b32 v255, 4, v0")
    A("  v_readfirstlane_b32 s61, v248")
    A("  v_and_b32 v0, 63, v0")
    A("  s_lshl_b32 s3, s3, 3")
    A(f"  s_add_u32 s{S_G}, s3, s61")
    A(f"  s_mul_i32 s{S_NB}, s{S_G}, {GS}")
    A(f"  s_mul_i32 s{S_BASE}, s61, {WA}")
    A(f"  s_add_u32 s{S_BASE}, s{S_BASE}, 32768")
    A("  s_cmp_lt_u32 s61, 3")
    A("  s_cbranch_scc1 K2_B0")
    A(f"  s_add_u32 s{S_BASE}, s{S_BASE}, {65536 - 3*WA}")
    A("K2_B0:")
    A(f"  s_mov_b32 s{S_NL2E}, 0xbfb8aa3b")
    A(f"  s_mov_b32 s{S_NL2E+1}, 0xbfb8aa3b")
    A(f"  s_mov_b32 s{S_ONE2}, 1.0")
    A(f"  s_mov_b32 s{S_ONE2+1}, 1.0")
    A(f"  s_mov_b32 s{S_PERM}, 0x07060302")
    A(f"  s_mov_b32 s{S_HIM}, 0")
    A(f"  s_mov_b32 s{S_HIM+1}, -1")
    A(f"  s_mov_b32 s{S_B1M}, 0xcccccccc")
    A(f"  s_mov_b32 s{S_B1M+1}, 0xcccccccc")
    A(f"  s_mov_b32 s{S_B0M}, 0xaaaaaaaa")
    A(f"  s_mov_b32 s{S_B0M+1}, 0xaaaaaaaa")
    A(f"  s_mov_b32 s{S_MASKHI}, 0xffff0000")
    A("  s_waitcnt lgkmcnt(0)")
    srd(S_WS, 14, WS_SIZE)
    table_loads()
    srd(S_H, 4, N * 128)
    srd(S_POS, 6, N * 6)
    srd(S_EA, 8, E * 32)
    srd(S_OUT, 12, N * 128 + N * 6)
    srd(S_WXS, 10, 128)
    A("  v_and_b32 v14, 31, v0")
    A("  v_lshrrev_b32 v15, 5, v0")
    A("  v_lshlrev_b32 v250, 4, v0")
    A(f"  s_lshl_b32 s61, s{S_NB}, 7")
    for i in range(4):
        A(f"  buffer_load_dwordx4 {vr(132+4*i,4)}, v250, {sr(S_H,4)}, s61 offen offset:{1024*i}")
    A("  v_lshlrev_b32 v251, 1, v14")
    A(f"  buffer_load_ushort v{V_WX0}, v251, {sr(S_WXS,4)}, 0 offen")
    A(f"  buffer_load_ushort v{V_WX1}, v251, {sr(S_WXS,4)}, 0 offen offset:64")
    A(f"  s_mov_b32 s61, {WS_LUT}")
    for i in range(8):
        A(f"  buffer_load_dwordx4 {vr(96+4*i,4)}, v255, {sr(S_WS,4)}, s61 offen")
        if i < 7:
            A("  s_add_u32 s61, s61, 8192")
    A(f"  s_mov_b32 s61, {WS_WF}")
    for f in range(20):
        if f and f % 4 == 0:
            A("  s_add_u32 s61, s61, 4096")
        dstr = V_W + 4 * f if f < 16 else 192 + 4 * (f - 16)
        A(f"  buffer_load_dwordx4 {vr(dstr,4)}, v250, {sr(S_WS,4)}, s61 offen offset:{1024*(f%4)}")
    A(f"  v_lshlrev_b32 v{V_HH16}, 4, v15")
    A(f"  v_add_u32 v{V_HB}, s{S_BASE}, v{V_HH16}")
    A("  v_lshrrev_b32 v248, 4, v14")
    A(f"  v_lshlrev_b32 v{V_OHW}, 5, v248")
    A("  v_bfe_u32 v248, v14, 2, 1")
    A(f"  v_lshl_add_u32 v{V_OHW}, v248, 4, v{V_OHW}")
    A("  v_bfe_u32 v248, v14, 3, 1")
    A(f"  v_lshl_add_u32 v{V_OHW}, v248, 3, v{V_OHW}")
    A("  v_and_b32 v248, 3, v14")
    A(f"  v_lshl_add_u32 v{V_OHW}, v248, 1, v{V_OHW}")
    A(f"  v_add_u32 v{V_OHW}, {L_OH}, v{V_OHW}")
    A(f"  v_add_u32 v{V_OHW}, s{S_BASE}, v{V_OHW}")
    A(f"  v_mul_u32_u24 v{V_OHR}, {OSTR}, v14")
    A(f"  v_add_u32 v{V_OHR}, v{V_OHR}, v{V_HB}")
    A(f"  v_add_u32 v{V_OHR}, {L_OH}, v{V_OHR}")
    A("  v_bfe_u32 v248, v14, 2, 1")
    A(f"  v_lshlrev_b32 v{V_BP0}, 5, v248")
    A("  v_lshrrev_b32 v248, 3, v14")
    A(f"  v_lshl_add_u32 v{V_BP0}, v248, 2, v{V_BP0}")
    A("  v_and_b32 v248, 3, v14")
    A(f"  v_add_u32 v{V_BP0}, v{V_BP0}, v248")
    A(f"  v_lshlrev_b32 v{V_BP0}, 2, v{V_BP0}")
    A(f"  v_lshl_add_u32 v{V_UR}, v14, 6, v{V_HH16}")
    A("  v_cmp_gt_u32 vcc, 3, v14")
    A("  v_mov_b32 v248, 192")
    A(f"  v_cndmask_b32 v{V_UR}, v248, v{V_UR}, vcc")
    A(f"  v_add_u32 v{V_UR}, {L_PACC}, v{V_UR}")
    A(f"  v_add_u32 v{V_UR}, s{S_BASE}, v{V_UR}")
    A(f"  v_add_u32 v{V_WL}, {L_WSH}, v250")
    A(f"  v_lshl_add_u32 v{V_LB}, v14, 3, s{S_BASE}")
    A(f"  v_mov_b32 v{V_ONE}, 0x3f80")
    A(f"  v_mov_b32 v{V_ZERO}, 0")
    for i in range(1, 4):
        A(f"  v_mov_b32 v{V_D2+i}, 0")
    for i in range(4):
        A(f"  v_mov_b32 v{148+i}, 0")
    A(f"  v_add_u32 v252, s{S_BASE}, v250")
    for i in range(2):
        A(f"  ds_write_b128 v252, v[148:151] offset:{L_OH+1024*i}")
    A(f"  v_cmp_gt_u32 vcc, 28, v0")
    A("  s_and_saveexec_b64 s[66:67], vcc")
    A(f"  ds_write_b128 v252, v[148:151] offset:{L_OH+2048}")
    A("  s_mov_b64 exec, s[66:67]")
    A(f"  v_cmp_gt_u32 vcc, 9, v0")
    A("  s_and_saveexec_b64 s[66:67], vcc")
    A(f"  ds_write_b128 v252, v[148:151] offset:{L_HROW+25*HSTR}")
    A("  s_mov_b64 exec, s[66:67]")
    A("  s_waitcnt vmcnt(34)")
    table_scan()
    stamp(2)
    A("  v_lshrrev_b32 v249, 3, v0")
    A(f"  v_mul_u32_u24 v249, {HSTR}, v249")
    A("  v_and_b32 v251, 7, v0")
    A("  v_lshl_add_u32 v249, v251, 4, v249")
    A(f"  v_add_u32 v249, s{S_BASE}, v249")
    A("  s_waitcnt vmcnt(30)")
    for i in range(3):
        A(f"  ds_write_b128 v249, {vr(132+4*i,4)} offset:{L_HROW+8*HSTR*i}")
    A(f"  v_cmp_gt_u32 vcc, 8, v0")
    A("  s_and_saveexec_b64 s[66:67], vcc")
    A(f"  ds_write_b128 v249, {vr(144,4)} offset:{L_HROW+8*HSTR*3}")
    A("  s_mov_b64 exec, s[66:67]")
    A("  s_waitcnt vmcnt(28)")
    A(f"  v_lshlrev_b32 v{V_WX0}, 16, v{V_WX0}")
    A(f"  v_lshlrev_b32 v{V_WX1}, 16, v{V_WX1}")
    A(f"  s_mov_b32 s{S_WIN}, 0")
    A("  s_branch K2_R0")
    A("K2_ROUND:")
    table_loads()
    A("  s_waitcnt vmcnt(0)")
    table_scan()
    A("K2_R0:")
    A(f"  s_sub_u32 s{S_N}, s{S_T}, s{S_WIN}")
    A(f"  s_min_u32 s{S_N}, s{S_N}, {CAP}")
    A(f"  s_add_u32 s61, s{S_WIN}, {CAP}")
    for j in range(4):
        A(f"  v_max_u32 v164, s{S_WIN}, v{156+j}")
        A(f"  v_add_u32 v165, v{156+j}, v{152+j}")
        A(f"  v_min_u32 v165, s61, v165")
        A(f"  v_sub_u32 v166, v164, v{156+j}")
        A(f"  v_add_u32 v166, v166, v{160+j}")
        A(f"  v_subrev_u32 v167, s{S_WIN}, v164")
        A(f"  v_lshl_add_u32 v167, v167, 3, s{S_BASE}")
        A(f"K2_EXP{j}:")
        A("  v_cmp_lt_u32 vcc, v164, v165")
        A(f"  s_cbranch_vccz K2_EXPD{j}")
        A("  s_mov_b64 exec, vcc")
        A(f"  ds_write_b32 v167, v166 offset:{L_LIST}")
        A("  v_add_u32 v164, 1, v164")
        A("  v_add_u32 v166, 1, v166")
        A("  v_add_u32 v167, 8, v167")
        A(f"  s_branch K2_EXP{j}")
        A(f"K2_EXPD{j}:")
        A("  s_mov_b64 exec, -1")
    stamp(3)
    A(f"  v_lshl_add_u32 v249, v0, 3, s{S_BASE}")
    for i in range(CAP // 64):
        A(f"  ds_read_b32 v{164+i}, v249 offset:{L_LIST+512*i}")
    A("  s_waitcnt lgkmcnt(0)")
    for i in range(CAP // 64):
        A(f"  v_lshlrev_b32 v{164+i}, 3, v{164+i}")
        A(f"  buffer_load_dwordx2 {vr(176+2*i,2)}, v{164+i}, {sr(S_WS,4)}, 0 offen")
    A(f"  s_cmp_lg_u32 s{S_WIN}, 0")
    A("  s_cbranch_scc1 K2_R1")
    A("  s_waitcnt vmcnt(28)")
    A("  v_add_u32 v254, 0x10000, v255")
    for i in range(8):
        A(f"  ds_write_b128 v{255 if i < 4 else 254}, {vr(96+4*i,4)} offset:{8192*(i&3)}")
    A("  s_waitcnt vmcnt(8)")
    for f in range(4):
        A(f"  ds_write_b128 v{V_WL}, {vr(192+4*f,4)} offset:{1024*f}")
    A("  s_waitcnt lgkmcnt(0)")
    for i in range(32):
        A(f"  v_mov_b32 v{V_ACC+i}, 0")
    for i in range(16):
        A(f"  v_mov_b32 v{V_PA+i}, 0")
    A("  s_barrier")
    A("K2_R1:")
    for i in range(CAP // 64):
        A(f"  s_waitcnt vmcnt({CAP//64-1-i})")
        A(f"  ds_write_b64 v249, {vr(176+2*i,2)} offset:{L_LIST+512*i}")
    A(f"  s_cmp_eq_u32 s{S_T}, 0")
    A("  s_cbranch_scc1 K2_EPI")
    A(f"  s_lshl_b32 s61, s{S_N}, 3")
    A("  v_add_u32 v249, s61, v249")
    A("  v_mov_b32 v164, 0")
    A(f"  v_mov_b32 v165, {GS << 16}")
    A(f"  ds_write_b64 v249, v[164:165] offset:{L_LIST}")
    A(f"  s_add_u32 s{S_NT}, s{S_N}, 31")
    A(f"  s_lshr_b32 s{S_NT}, s{S_NT}, 5")
    A(f"  s_mov_b32 s{S_TC}, 0")
    A(f"  v_mov_b32 v{V_LA}, v{V_LB}")
    stamp(4)
    load_tile(0)
    A("K2_LOOP:")
    fstamp(0, True)
    load_tile(1)
    fstamp(1, True)
    compute_tile(0, "0")
    fstamp(9, True)
    A(f"  s_add_u32 s{S_TC}, s{S_TC}, 1")
    A(f"  s_cmp_ge_u32 s{S_TC}, s{S_NT}")
    A("  s_cbranch_scc1 K2_LOOPD")
    load_tile(0)
    compute_tile(1, "1")
    A(f"  s_add_u32 s{S_TC}, s{S_TC}, 1")
    A(f"  s_cmp_lt_u32 s{S_TC}, s{S_NT}")
    A("  s_cbranch_scc1 K2_LOOP")
    A("K2_LOOPD:")
    A("  s_waitcnt vmcnt(0)")
    A(f"  s_add_u32 s{S_WIN}, s{S_WIN}, {CAP}")
    A(f"  s_cmp_lt_u32 s{S_WIN}, s{S_T}")
    A("  s_cbranch_scc1 K2_ROUND")
    A("K2_EPI:")
    A("  s_waitcnt vmcnt(0)")
    stamp(5)
    A("  v_lshlrev_b32 v250, 4, v0")
    A(f"  s_mov_b32 s61, {WS_WF+20*1024}")
    for f in range(16):
        if f and f % 4 == 0:
            A("  s_add_u32 s61, s61, 4096")
        A(f"  buffer_load_dwordx4 {vr(V_W+4*f,4)}, v250, {sr(S_WS,4)}, s61 offen offset:{1024*(f%4)}")
    A("  v_and_b32 v14, 31, v0")
    A(f"  v_mul_u32_u24 v249, {HSTR}, v14")
    A(f"  v_add_u32 v251, v249, v{V_HB}")
    for s in range(4):
        A(f"  ds_read_b128 {vr(V_T+4*s,4)}, v251 offset:{L_HROW+32*s}")
    A(f"  v_lshrrev_b32 v252, 1, v{V_HH16}")
    A("  v_add_u32 v252, v249, v252")
    A(f"  v_add_u32 v252, s{S_BASE}, v252")
    for ot in range(2):
        for q in range(4):
            A(f"  ds_read_b64 {vr(192+8*ot+2*q,2)}, v252 offset:{L_HROW+64*ot+16*q}")
    for c in range(3):
        A(f"  v_mov_b32 v{218+c}, v{V_PA+c}")
    A(f"  v_add_u32 v230, s{S_NB}, v14")
    A("  v_mul_u32_u24 v231, 6, v230")
    for c in range(3):
        A(f"  buffer_load_ushort v{222+c}, v231, {sr(S_POS,4)}, 0 offen offset:{2*c}")
    for mt in range(2):
        for i in range(8):
            A(f"  v_cvt_pk_bf16_f32 v{V_MP+8*mt+i}, v{V_ACC+16*mt+2*i}, v{V_ACC+16*mt+2*i+1}")
    A("  s_waitcnt vmcnt(3) lgkmcnt(0)")
    bops = [vr(V_T + 4 * s, 4) for s in range(4)] + [vr(V_MP + 4 * s, 4) for s in range(4)]
    for ks in range(8):
        for ot in range(2):
            d = vr(V_D1 + 16 * ot, 16)
            c = "0" if ks == 0 else d
            A(f"  v_mfma_f32_32x32x16_bf16 {d}, {vr(V_W+4*(2*ks+ot),4)}, {bops[ks]}, {c}")
    A("  s_nop 7")
    A("  s_nop 7")
    def post2(i, r):
        A(f"  v_cvt_pk_bf16_f32 v{V_T}, v{r}, v{r+1}")
        A(f"  v_lshlrev_b32 v{r}, 16, v{V_T}")
        A(f"  v_and_b32 v{r+1}, s{S_MASKHI}, v{V_T}")
        A(f"  v_lshlrev_b32 v{V_T+2}, 16, v{192+i}")
        A(f"  v_and_b32 v{V_T+3}, s{S_MASKHI}, v{192+i}")
        A(f"  v_pk_add_f32 {vr(r,2)}, {vr(r,2)}, {vr(V_T+2,2)}")
        A(f"  v_cvt_pk_bf16_f32 v{V_MP+i}, v{r}, v{r+1}")
    silu_pairs(V_D1, 16, post2)
    A(f"  v_cmp_gt_u32 vcc, {GS}, v14")
    A("  s_and_saveexec_b64 s[66:67], vcc")
    A(f"  v_lshrrev_b32 v252, 1, v{V_HH16}")
    A("  v_lshl_add_u32 v252, v230, 7, v252")
    for ot in range(2):
        for q in range(4):
            A(f"  buffer_store_dwordx2 {vr(V_MP+8*ot+2*q,2)}, v252, {sr(S_OUT,4)}, 0 offen offset:{64*ot+16*q}")
    A("  s_waitcnt vmcnt(8)")
    A(f"  v_cvt_pk_bf16_f32 v226, v218, v219")
    A(f"  v_cvt_pk_bf16_f32 v227, v220, v220")
    A(f"  v_lshlrev_b32 v218, 16, v226")
    A(f"  v_and_b32 v219, s{S_MASKHI}, v226")
    A(f"  v_lshlrev_b32 v220, 16, v227")
    for c in range(3):
        A(f"  v_lshlrev_b32 v{222+c}, 16, v{222+c}")
        A(f"  v_add_f32 v{222+c}, v{222+c}, v{218+c}")
        A(f"  v_cvt_pk_bf16_f32 v{222+c}, v{222+c}, v{222+c}")
    A("  v_cmp_gt_u32 vcc, 32, v0")
    A("  s_and_b64 exec, exec, vcc")
    A(f"  s_mov_b32 s61, {N*128}")
    for c in range(3):
        A(f"  buffer_store_short v{222+c}, v231, {sr(S_OUT,4)}, s61 offen offset:{2*c}")
    if STAMP:
        A("  s_waitcnt vmcnt(0)")
        stamp(6)
        stamp(7, True)
        A("  s_mov_b64 exec, 1")
        for i in range(8):
            A(f"  v_mov_b32 v{16+i}, s{70+2*i}")
        A(f"  v_mov_b32 v24, s{S_T}")
        A("  v_mov_b32 v25, s2")
        A(f"  s_lshl_b32 s61, s{S_G}, 6")
        A("  s_add_u32 s61, s61, 0x1000000")
        A("  v_mov_b32 v30, 0")
        A(f"  buffer_store_dwordx4 v[16:19], v30, {sr(S_WS,4)}, s61 offen")
        A(f"  buffer_store_dwordx4 v[20:23], v30, {sr(S_WS,4)}, s61 offen offset:16")
        A(f"  buffer_store_dwordx2 v[24:25], v30, {sr(S_WS,4)}, s61 offen offset:32")
        for i in range(10):
            A(f"  v_mov_b32 v{32+i}, s{88+i}")
        A("  s_add_u32 s61, s61, 0x40000")
        A(f"  buffer_store_dwordx4 v[32:35], v30, {sr(S_WS,4)}, s61 offen")
        A(f"  buffer_store_dwordx4 v[36:39], v30, {sr(S_WS,4)}, s61 offen offset:16")
        A(f"  buffer_store_dwordx2 v[40:41], v30, {sr(S_WS,4)}, s61 offen offset:32")
    A("K2_END:")
    A("  s_endpgm")
    for l in SLOW:
        A(l)

LDS_MAIN = 163840
A(HEADER.rstrip("\n"))
A(f"; @launch kernel=egnn_sort_kernel grid=({NCH},1,1) block=(1024,1,1) lds=8448")
A(f"; @launch kernel=gather_scatter__cheap_equivariant_egnn__graph_kernel grid=(256,1,1) block=(512,1,1) lds={LDS_MAIN}")
A('.amdgcn_target "amdgcn-amd-amdhsa--gfx950"')
A(".text")
k_sort()
k_main()
A('.section .rodata,"a"')
for nm, nv in (("egnn_sort_kernel", 80), ("gather_scatter__cheap_equivariant_egnn__graph_kernel", 256)):
    A(".p2align 6")
    A(f".amdhsa_kernel {nm}")
    A(f"  .amdhsa_next_free_vgpr {nv}")
    A("  .amdhsa_next_free_sgpr 102")
    A(f"  .amdhsa_accum_offset {nv}")
    A("  .amdhsa_group_segment_fixed_size 0")
    A("  .amdhsa_kernarg_size 88")
    A("  .amdhsa_user_sgpr_count 2")
    A("  .amdhsa_user_sgpr_kernarg_segment_ptr 1")
    A("  .amdhsa_system_sgpr_workgroup_id_x 1")
    A("  .amdhsa_float_denorm_mode_32 3")
    A(".end_amdhsa_kernel")
print("\n".join(out))
```

```python
import sys, os, re

N = 50000
E = 800000
NCH = 256
CH = E // NCH
GS = 25
NG = N // GS
CAP = 512

WS_REC = 0
WS_TAB = 0x800000
WS_WF = 0xC00000
WS_LUT = 0xC10000
WS_POS4 = 0xC20000
NWG2 = 250
STAMP = int(os.environ.get("STAMP", "0"))
WS_SIZE = 0x2000000 if STAMP else 0x1000000

L_LIST = 0
L_HROW = (CAP + 96) * 8
HSTR = 144
L_OH = L_HROW + 25 * HSTR + 128
OSTR = 80
L_U = L_OH + 25 * OSTR + 64
WA = L_U + 256
assert L_HROW % 16 == 0 and L_OH % 16 == 0 and L_U % 16 == 0 and 3 * WA <= 32768 and 5 * WA <= 65536


class I:
    __slots__ = ("t", "pre")
    def __init__(s, t):
        s.t = t
        s.pre = 0

out = []
CUR = [out]
def A(s=""):
    CUR[-1].append(I(s))

class seg:
    def __enter__(s):
        s.l = []
        CUR.append(s.l)
        return s.l
    def __exit__(s, *a):
        CUR.pop()

def emit(l):
    CUR[-1].extend(l)

def vr(b, n=1):
    return f"v{b}" if n == 1 else f"v[{b}:{b+n-1}]"
def sr(b, n=1):
    return f"s{b}" if n == 1 else f"s[{b}:{b+n-1}]"

HEADER = open(sys.argv[1]).read() if len(sys.argv) > 1 else ""

def srd(d, b, nbytes):
    A(f"  s_mov_b32 s{d}, s{b}")
    A(f"  s_and_b32 s{d+1}, s{b+1}, 0xffff")
    A(f"  s_mov_b32 s{d+2}, {nbytes}")
    A(f"  s_mov_b32 s{d+3}, 0x00020000")

def stamp(i, real=False):
    if not STAMP:
        return
    A(f"  s_{'memrealtime' if real else 'memtime'} s[{70+2*i}:{71+2*i}]")
    A("  s_waitcnt lgkmcnt(0)")

def wave_scan(v):
    for sh in (1, 2, 4, 8):
        A("  s_nop 1")
        A(f"  v_add_u32_dpp v{v}, v{v}, v{v} row_shr:{sh} row_mask:0xf bank_mask:0xf")
    A("  s_nop 1")
    A(f"  v_add_u32_dpp v{v}, v{v}, v{v} row_bcast:15 row_mask:0xa bank_mask:0xf")
    A("  s_nop 1")
    A(f"  v_add_u32_dpp v{v}, v{v}, v{v} row_bcast:31 row_mask:0xc bank_mask:0xf")
    A("  s_nop 1")

RE_V = re.compile(r"^v(\d+)$|^v\[(\d+):(\d+)\]$")
def regs_of(tok):
    tok = tok.strip().split(" ")[0]
    m = RE_V.match(tok)
    if not m:
        return set()
    if m.group(1) is not None:
        return {int(m.group(1))}
    return set(range(int(m.group(2)), int(m.group(3)) + 1))

def classify(t):
    t = t.split(";")[0].strip()
    if not t or t.endswith(":") or t.startswith("."):
        return None
    p = t.split(None, 1)
    mn = p[0]
    ops = [o.strip() for o in p[1].split(",")] if len(p) > 1 else []
    R = [regs_of(o) for o in ops]
    allr = set().union(*R) if R else set()
    d = dict(mn=mn, rd=set(), wr=set(), kind="s", ws=1, ab=set(), c=set())
    if mn == "s_nop":
        d["ws"] = int(ops[0]) + 1
    elif mn.startswith("s_"):
        pass
    elif mn.startswith("v_mfma"):
        d["kind"] = "mfma2" if "4x4x4" in mn else "mfma8"
        d["wr"] = R[0]
        d["ab"] = R[1] | R[2]
        d["c"] = R[3]
        d["rd"] = R[1] | R[2] | R[3]
    elif mn.startswith("ds_read") or mn.startswith("ds_bpermute"):
        d["kind"] = "mem"
        d["wr"] = R[0]
        d["rd"] = set().union(*R[1:]) | (R[0] if "d16" in mn else set())
    elif mn.startswith("ds_") or mn.startswith("buffer_store"):
        d["kind"] = "mem"
        d["rd"] = allr
    elif mn.startswith("buffer_load"):
        d["kind"] = "mem"
        d["wr"] = R[0]
        d["rd"] = set().union(*R[1:])
    elif mn.startswith("v_cmp") or mn.startswith("v_readlane") or mn.startswith("v_readfirstlane"):
        d["kind"] = "valu"
        d["rd"] = allr
    elif "swap" in mn:
        d["kind"] = "dpp"
        d["rd"] = allr
        d["wr"] = allr
    elif mn.startswith("v_"):
        d["kind"] = "dpp" if "_dpp" in mn else "valu"
        d["wr"] = R[0]
        d["rd"] = set().union(*R[1:]) if len(R) > 1 else set()
        if "_dpp" in mn or "fmac" in mn:
            d["rd"] |= R[0]
    else:
        raise ValueError(t)
    return d

def pad_trace(tr):
    changed = False
    hist = []
    pos = 0
    for ins in tr:
        d = classify(ins.t)
        if d is None:
            continue
        pos += ins.pre
        need = 0
        for (p, pp) in reversed(hist):
            dist = pos - pp - 1
            if dist > 24:
                break
            req = 0
            if p["kind"] in ("mfma8", "mfma2"):
                full = 12 if p["kind"] == "mfma8" else 7
                if d["kind"] in ("mfma8", "mfma2"):
                    if p["wr"] & d["ab"]:
                        req = full
                    elif p["wr"] & d["c"]:
                        req = (0 if p["kind"] == "mfma8" else 2) if p["wr"] == d["c"] else full
                    elif p["wr"] & d["wr"]:
                        req = full
                elif d["kind"] != "s":
                    if p["wr"] & (d["rd"] | d["wr"]):
                        req = full
                    elif p["c"] & d["wr"]:
                        req = full
            elif p["kind"] in ("valu", "dpp"):
                if d["kind"] in ("mfma8", "mfma2") and p["wr"] & d["rd"]:
                    req = 2
                elif d["kind"] == "dpp" and p["wr"] & d["rd"]:
                    req = 2
            need = max(need, req - dist)
        if need > 0:
            ins.pre += need
            pos += need
            changed = True
        hist.append((d, pos))
        pos += d["ws"]
    return changed

def render(l):
    res = []
    for ins in l:
        n = ins.pre
        while n > 0:
            k = min(n, 8)
            res.append(f"  s_nop {k-1}")
            n -= k
        res.append(ins.t)
    return res

def k_sort():
    A(".globl egnn_sort_kernel")
    A(".p2align 8")
    A(".type egnn_sort_kernel,@function")
    A("egnn_sort_kernel:")
    A(f"  s_cmp_ge_u32 s2, {NCH}")
    A("  s_cbranch_scc1 K1_END")
    A("  s_load_dwordx4 s[4:7], s[0:1], 24")
    A("  s_load_dwordx2 s[8:9], s[0:1], 40")
    A("  s_load_dwordx2 s[10:11], s[0:1], 56")
    A("  s_load_dwordx2 s[12:13], s[0:1], 80")
    A("  s_load_dwordx2 s[14:15], s[0:1], 8")
    A("  v_lshlrev_b32 v1, 3, v0")
    A("  v_mov_b32 v2, 0")
    A("  v_mov_b32 v3, 0")
    A("  ds_write_b64 v1, v[2:3]")
    A(f"  s_mul_i32 s3, s2, {CH}")
    A("  s_movk_i32 s28, 4096")
    A("  s_movk_i32 s29, 8192")
    A("  s_movk_i32 s30, 12288")
    A("  s_mov_b32 s31, 0x51EB851F")
    A("  s_waitcnt lgkmcnt(0)")
    srd(16, 4, E * 4)
    srd(20, 6, E * 4)
    srd(24, 12, WS_SIZE)
    srd(60, 14, N * 6)
    A("  v_add_u32 v4, s3, v0")
    A("  v_lshlrev_b32 v5, 2, v4")
    so = ["0", "s28", "s29", "s30"]
    for k in range(4):
        A(f"  buffer_load_dword v{10+k}, v5, s[20:23], {so[k]} offen")
    for k in range(4):
        A(f"  buffer_load_dword v{14+k}, v5, s[16:19], {so[k]} offen")
    A("  s_mul_i32 s64, s2, 196")
    A("  v_add_u32 v76, s64, v0")
    A("  v_mul_u32_u24 v77, 6, v76")
    A("  v_lshlrev_b32 v76, 3, v76")
    A("  buffer_load_ushort v78, v77, s[60:63], 0 offen")
    A("  buffer_load_ushort v79, v77, s[60:63], 0 offen offset:2")
    A("  buffer_load_ushort v77, v77, s[60:63], 0 offen offset:4")
    A("  v_mov_b32 v6, 1")
    A("  s_barrier")
    A("  s_waitcnt vmcnt(7)")
    for k in range(4):
        A(f"  v_mul_hi_u32 v{18+k}, v{10+k}, s31")
    for k in range(4):
        A(f"  v_lshrrev_b32 v{18+k}, 3, v{18+k}")
    for k in range(4):
        A(f"  v_mul_u32_u24 v{22+k}, {GS}, v{18+k}")
    for k in range(4):
        A(f"  v_sub_u32 v{22+k}, v{10+k}, v{22+k}")
    for k in range(4):
        A(f"  v_lshlrev_b32 v{18+k}, 2, v{18+k}")
    for k in range(3):
        A(f"  ds_add_rtn_u32 v{26+k}, v{18+k}, v6")
    A(f"  v_cmp_gt_u32 vcc, {CH - 3072}, v0")
    A("  s_and_saveexec_b64 s[32:33], vcc")
    A("  s_cbranch_execz K1_A")
    A("  ds_add_rtn_u32 v29, v21, v6")
    A("K1_A:")
    A("  s_mov_b64 exec, s[32:33]")
    A("  s_waitcnt lgkmcnt(0)")
    A("  s_barrier")
    A("  ds_read_b64 v[30:31], v1")
    A("  s_waitcnt lgkmcnt(0)")
    A("  v_add_u32 v32, v30, v31")
    A("  v_mov_b32 v33, v32")
    wave_scan(33)
    A("  v_lshrrev_b32 v34, 6, v0")
    A("  v_lshlrev_b32 v35, 2, v34")
    A("  v_and_b32 v36, 63, v0")
    A("  v_cmp_eq_u32 vcc, 63, v36")
    A("  s_and_saveexec_b64 s[32:33], vcc")
    A("  ds_write_b32 v35, v33 offset:8192")
    A("  s_mov_b64 exec, s[32:33]")
    A("  s_waitcnt lgkmcnt(0)")
    A("  s_barrier")
    A("  v_and_b32 v37, 15, v0")
    A("  v_lshlrev_b32 v38, 2, v37")
    A("  ds_read_b32 v39, v38 offset:8192")
    A("  v_cmp_lt_u32 vcc, v37, v34")
    A("  s_waitcnt lgkmcnt(0)")
    A("  v_cndmask_b32 v39, 0, v39, vcc")
    for sh in (1, 2, 4, 8):
        A("  s_nop 1")
        A(f"  v_add_u32_dpp v39, v39, v39 row_shr:{sh} row_mask:0xf bank_mask:0xf")
    A("  s_nop 1")
    A("  v_readlane_b32 s34, v39, 15")
    A("  v_sub_u32 v40, v33, v32")
    A("  s_nop 1")
    A("  v_add_u32 v40, s34, v40")
    A("  v_add_u32 v41, v40, v30")
    A("  ds_write_b64 v1, v[40:41]")
    A("  v_lshl_or_b32 v42, v30, 16, v40")
    A("  v_lshl_or_b32 v43, v31, 16, v41")
    A(f"  s_mul_i32 s35, s2, {NG*4}")
    A(f"  s_add_u32 s35, s35, {WS_TAB}")
    A(f"  v_cmp_gt_u32 vcc, {NG//2}, v0")
    A("  s_and_saveexec_b64 s[32:33], vcc")
    A("  s_cbranch_execz K1_B")
    A("  buffer_store_dwordx2 v[42:43], v1, s[24:27], s35 offen")
    A("K1_B:")
    A("  s_mov_b64 exec, s[32:33]")
    A("  s_waitcnt lgkmcnt(0)")
    A("  s_barrier")
    for k in range(4):
        A(f"  ds_read_b32 v{44+k}, v{18+k}")
    A("  s_waitcnt vmcnt(0) lgkmcnt(0)")
    A("  s_lshl_b32 s36, s3, 3")
    for k in range(4):
        A(f"  v_add_u32 v{44+k}, v{44+k}, v{26+k}")
        A(f"  v_lshlrev_b32 v{44+k}, 3, v{44+k}")
        A(f"  v_add_u32 v{48+2*k}, {1024*k}, v4")
        A(f"  v_lshl_or_b32 v{49+2*k}, v{22+k}, 16, v{14+k}")
    for k in range(3):
        A(f"  buffer_store_dwordx2 v[{48+2*k}:{49+2*k}], v{44+k}, s[24:27], s36 offen")
    A(f"  v_cmp_gt_u32 vcc, {CH - 3072}, v0")
    A("  s_and_saveexec_b64 s[32:33], vcc")
    A("  s_cbranch_execz K1_C")
    A("  buffer_store_dwordx2 v[54:55], v47, s[24:27], s36 offen")
    A("K1_C:")
    A("  s_mov_b64 exec, s[32:33]")
    A("  v_lshl_or_b32 v78, v79, 16, v78")
    A("  v_mov_b32 v79, v77")
    A(f"  s_mov_b32 s64, {WS_POS4}")
    A("  v_cmp_gt_u32 vcc, 196, v0")
    A("  s_and_saveexec_b64 s[32:33], vcc")
    A("  s_cbranch_execz K1_D")
    A("  buffer_store_dwordx2 v[78:79], v76, s[24:27], s64 offen")
    A("K1_D:")
    A("  s_mov_b64 exec, s[32:33]")
    A("  s_cmp_lt_u32 s2, 64")
    A("  s_cbranch_scc1 K1_NOLUT")
    A("  s_cmp_ge_u32 s2, 96")
    A("  s_cbranch_scc1 K1_END")
    A("  s_sub_u32 s37, s2, 64")
    A("  s_lshl_b32 s37, s37, 10")
    A("  v_add_u32 v60, s37, v0")
    A("  v_and_b32 v61, 0x3fff, v60")
    A("  v_lshrrev_b32 v62, 14, v60")
    A("  v_lshl_or_b32 v61, v62, 15, v61")
    A("  v_lshlrev_b32 v61, 16, v61")
    A("  v_mul_f32 v61, 0x42800000, v61")
    A("  v_mul_f32 v62, 0xbfb8aa3b, v61")
    A("  v_exp_f32 v62, v62")
    A("  s_nop 0")
    A("  v_add_f32 v62, 1.0, v62")
    A("  v_rcp_f32 v62, v62")
    A("  s_nop 0")
    A("  v_mul_f32 v61, v61, v62")
    A("  v_cvt_pk_bf16_f32 v61, v61, v61")
    A("  v_lshlrev_b32 v60, 1, v60")
    A(f"  s_mov_b32 s37, {WS_LUT}")
    A("  buffer_store_short v61, v60, s[24:27], s37 offen")
    A("  s_branch K1_END")
    A("K1_NOLUT:")
    A("  s_cmp_ge_u32 s2, 36")
    A("  s_cbranch_scc1 K1_END")
    A("  v_readfirstlane_b32 s37, v34")
    A("  s_nop 3")
    A("  s_cmp_lg_u32 s37, 0")
    A("  s_cbranch_scc1 K1_END")
    A("  s_cmp_ge_u32 s2, 20")
    A("  s_cbranch_scc1 K1_WH")
    srd(44, 8, 145 * 128)
    A("  s_lshr_b32 s38, s2, 1")
    A("  s_lshl_b32 s40, s38, 4")
    A("  s_mov_b32 s41, 8")
    A("  s_mov_b32 s42, 4")
    A("  s_mov_b32 s43, 1")
    A("  s_cmp_lt_u32 s38, 8")
    A("  s_cbranch_scc1 K1_WGO")
    A("  s_movk_i32 s40, 129")
    A("  s_cmp_eq_u32 s38, 8")
    A("  s_cbranch_scc1 K1_WGO")
    A("  s_movk_i32 s40, 128")
    A("  s_movk_i32 s41, 4096")
    A("  s_movk_i32 s42, 4096")
    A("  s_movk_i32 s43, 4096")
    A("  s_branch K1_WGO")
    A("K1_WH:")
    srd(44, 10, 128 * 128)
    A("  s_sub_u32 s38, s2, 20")
    A("  s_lshr_b32 s38, s38, 1")
    A("  s_lshl_b32 s40, s38, 4")
    A("  s_mov_b32 s41, 8")
    A("  s_mov_b32 s42, 4")
    A("  s_mov_b32 s43, 1")
    A("  s_cmp_lt_u32 s38, 4")
    A("  s_cbranch_scc1 K1_WGO")
    A("  s_mov_b32 s41, 4")
    A("  s_mov_b32 s42, 8")
    A("K1_WGO:")
    A("  v_lshrrev_b32 v60, 5, v0")
    A("  v_mul_lo_u32 v60, v60, s41")
    A("  v_add_u32 v60, s40, v60")
    A("  v_lshlrev_b32 v60, 7, v60")
    A("  v_and_b32 v61, 31, v0")
    A("  s_and_b32 s39, s2, 1")
    A("  s_lshl_b32 s39, s39, 5")
    A("  v_add_u32 v61, s39, v61")
    A("  v_lshl_add_u32 v60, v61, 1, v60")
    for j in range(8):
        A(f"  s_mul_i32 s48, s42, {(j>>2)*128}")
        A(f"  s_mul_i32 s49, s43, {(j&3)*128}")
        A(f"  s_add_u32 s{50+j}, s48, s49")
    for j in range(8):
        A(f"  buffer_load_ushort v{62+j}, v60, s[44:47], s{50+j} offen")
    A("  s_waitcnt vmcnt(0)")
    A("  s_cmp_ge_u32 s2, 20")
    A("  s_cbranch_scc1 K1_NOSC")
    for j in range(8):
        A(f"  v_lshlrev_b32 v{62+j}, 16, v{62+j}")
        A(f"  v_mul_f32 v{62+j}, 0x3c800000, v{62+j}")
        A(f"  v_lshrrev_b32 v{62+j}, 16, v{62+j}")
    A("K1_NOSC:")
    for p in range(4):
        A(f"  v_lshl_or_b32 v{72+p}, v{63+2*p}, 16, v{62+2*p}")
    A("  v_lshlrev_b32 v61, 4, v0")
    A("  s_lshl_b32 s48, s2, 10")
    A(f"  s_add_u32 s48, s48, {WS_WF}")
    A("  buffer_store_dwordx4 v[72:75], v61, s[24:27], s48 offen")
    A("K1_END:")
    A("  s_endpgm")

V_HH16, V_HB, V_OHW, V_OHR, V_UR, V_OHA = 1, 2, 3, 4, 5, 6
ENT = [7, 8]
DF = [[252, 253, 254], [9, 10, 11]]
V_W9 = 12
V_WX0, V_WX1 = 13, 15
V_W = 16
V_W8 = 80
V_PA = 88
V_D2 = 92
V_ZERO = 93
V_ACC = 96
V_D1 = 128
V_MP = 160
V_T = 176
V_H = 192
HS = [208, 228]
EA = [224, 244]
V_PS, V_PD = 248, 250
V_LA = 255
V_TMP = 248
V_E, V_HALF = 246, 247

S_H, S_POS, S_EA, S_WS, S_OUT, S_WXS = 16, 20, 24, 28, 32, 36
S_NB, S_T, S_WIN, S_N, S_NT, S_TC = 40, 41, 42, 43, 44, 45
S_NL2E, S_ONE2 = 46, 48
S_BASE, S_PERM, S_G = 50, 51, 52
S_HIM, S_B1M, S_B0M = 54, 56, 58
S_MASKHI = 60
S_UM = 68
S_C128, S_C144, S_C80, S_P4S, S_P4D = 88, 89, 90, 91, 92

def silu_pairs(base, npairs, post):
    for i0 in range(0, npairs, 2):
        idx = [i0, i0 + 1]
        tp = {i0: V_TMP, i0 + 1: V_TMP + 4}
        for i in idx:
            r = base + 2 * i
            A(f"  v_cvt_pk_bf16_f32 v{tp[i]}, v{r}, v{r+1}")
        for i in idx:
            r = base + 2 * i
            A(f"  v_lshlrev_b32 v{r}, 16, v{tp[i]}")
            A(f"  v_and_b32 v{r+1}, s{S_MASKHI}, v{tp[i]}")
        for i in idx:
            r = base + 2 * i
            A(f"  v_pk_mul_f32 {vr(tp[i]+2,2)}, {vr(r,2)}, {sr(S_NL2E,2)}")
        for i in idx:
            A(f"  v_exp_f32 v{tp[i]+2}, v{tp[i]+2}")
            A(f"  v_exp_f32 v{tp[i]+3}, v{tp[i]+3}")
        A("  s_nop 0")
        for i in idx:
            A(f"  v_pk_add_f32 {vr(tp[i]+2,2)}, {vr(tp[i]+2,2)}, {sr(S_ONE2,2)}")
        for i in idx:
            A(f"  v_rcp_f32 v{tp[i]+2}, v{tp[i]+2}")
            A(f"  v_rcp_f32 v{tp[i]+3}, v{tp[i]+3}")
        A("  s_nop 0")
        for i in idx:
            r = base + 2 * i
            A(f"  v_pk_mul_f32 {vr(r,2)}, {vr(r,2)}, {vr(tp[i]+2,2)}")
        for i in idx:
            post(i, base + 2 * i)

def silu_from_packed(p, r, t):
    L = []
    L.append(f"  v_lshlrev_b32 v{r}, 16, v{p}")
    L.append(f"  v_and_b32 v{r+1}, s{S_MASKHI}, v{p}")
    L.append(f"  v_mul_f32 v{r}, 0x42800000, v{r}")
    L.append(f"  v_mul_f32 v{r+1}, 0x42800000, v{r+1}")
    L.append(f"  v_mul_f32 v{t}, s{S_NL2E}, v{r}")
    L.append(f"  v_mul_f32 v{t+1}, s{S_NL2E}, v{r+1}")
    L.append(f"  v_exp_f32 v{t}, v{t}")
    L.append(f"  v_exp_f32 v{t+1}, v{t+1}")
    L.append("  s_nop 0")
    L.append(f"  v_add_f32 v{t}, 1.0, v{t}")
    L.append(f"  v_add_f32 v{t+1}, 1.0, v{t+1}")
    L.append(f"  v_rcp_f32 v{t}, v{t}")
    L.append(f"  v_rcp_f32 v{t+1}, v{t+1}")
    L.append("  s_nop 0")
    L.append(f"  v_mul_f32 v{r}, v{r}, v{t}")
    L.append(f"  v_mul_f32 v{r+1}, v{r+1}, v{t+1}")
    L.append(f"  v_cvt_pk_bf16_f32 v{t}, v{r}, v{r+1}")
    L.append(f"  v_lshlrev_b32 v{r}, 16, v{t}")
    L.append(f"  v_and_b32 v{r+1}, s{S_MASKHI}, v{t}")
    return L

SLOW = []

def front_a(nt, chk):
    D = V_D1 + 16 * nt
    P = V_MP + 8 * nt
    L = []
    for i in range(8):
        L.append(f"  v_cvt_pk_bf16_f32 v{P+i}, v{D+2*i}, v{D+2*i+1}")
    L.append(f"  v_or3_b32 v{chk}, v{P}, v{P+1}, v{P+2}")
    L.append(f"  v_or3_b32 v{chk}, v{chk}, v{P+3}, v{P+4}")
    L.append(f"  v_or3_b32 v{chk}, v{chk}, v{P+5}, v{P+6}")
    L.append(f"  v_or_b32 v{chk}, v{chk}, v{P+7}")
    L.append(f"  v_and_b32 v{chk}, 0x40004000, v{chk}")
    L.append(f"  v_cmp_ne_u32 vcc, 0, v{chk}")
    return L

def lut_pair(nt, i):
    D = V_D1 + 16 * nt
    P = V_MP + 8 * nt
    return [f"  v_add_u32_sdwa v{D+2*i}, v{P+i}, v{P+i} dst_sel:DWORD dst_unused:UNUSED_PAD src0_sel:WORD_0 src1_sel:WORD_0",
            f"  v_add_u32_sdwa v{D+2*i+1}, v{P+i}, v{P+i} dst_sel:DWORD dst_unused:UNUSED_PAD src0_sel:WORD_1 src1_sel:WORD_1",
            f"  ds_read_u16_d16_hi v{D+2*i}, v{D+2*i}",
            f"  ds_read_u16_d16_hi v{D+2*i+1}, v{D+2*i+1}"]

def slow_branch(nt, tag, tmp):
    D = V_D1 + 16 * nt
    P = V_MP + 8 * nt
    S = [f"K2_SLOW{tag}:", "  s_waitcnt lgkmcnt(0)"]
    for i in range(8):
        S += silu_from_packed(P + i, D + 2 * i, tmp)
    S.append("  s_nop 1")
    S.append(f"  s_branch K2_BACK{tag}")
    SLOW.extend(S)
    return [f"  s_cbranch_vccnz K2_SLOW{tag}", f"K2_BACK{tag}:"]

def back(nt, half):
    D = V_D1 + 16 * nt
    P = V_MP + 8 * nt
    L = []
    for i in range(4 * half, 4 * half + 4):
        for k in range(2):
            r = 2 * i + k
            if nt == 0:
                L.append(f"  v_mul_f32 v{V_T+r}, v{D+r}, v{V_WX0}")
            else:
                L.append(f"  v_fmac_f32 v{V_T+r}, v{D+r}, v{V_WX1}")
        L.append(f"  v_perm_b32 v{P+i}, v{D+2*i+1}, v{D+2*i}, s{S_PERM}")
    return L

def pos_math(df):
    t = V_T
    L = []
    L.append(f"  v_lshlrev_b32 v{t}, 16, v{V_PS}")
    L.append(f"  v_and_b32 v{t+1}, s{S_MASKHI}, v{V_PS}")
    L.append(f"  v_lshlrev_b32 v{t+2}, 16, v{V_PS+1}")
    L.append(f"  v_lshlrev_b32 v{t+3}, 16, v{V_PD}")
    L.append(f"  v_and_b32 v{t+4}, s{S_MASKHI}, v{V_PD}")
    L.append(f"  v_lshlrev_b32 v{t+5}, 16, v{V_PD+1}")
    for c in range(3):
        L.append(f"  v_sub_f32 v{t+c}, v{t+3+c}, v{t+c}")
    L.append(f"  v_cvt_pk_bf16_f32 v{t+3}, v{t}, v{t+1}")
    L.append(f"  v_cvt_pk_bf16_f32 v{t+4}, v{t+2}, v{t+2}")
    L.append(f"  v_lshlrev_b32 v{df[0]}, 16, v{t+3}")
    L.append(f"  v_and_b32 v{df[1]}, s{S_MASKHI}, v{t+3}")
    L.append(f"  v_lshlrev_b32 v{df[2]}, 16, v{t+4}")
    for c in range(3):
        L.append(f"  v_mul_f32 v{t+c}, v{df[c]}, v{df[c]}")
    L.append(f"  v_cvt_pk_bf16_f32 v{t+3}, v{t}, v{t+1}")
    L.append(f"  v_cvt_pk_bf16_f32 v{t+4}, v{t+2}, v{t+2}")
    L.append(f"  v_lshlrev_b32 v{t}, 16, v{t+3}")
    L.append(f"  v_and_b32 v{t+1}, s{S_MASKHI}, v{t+3}")
    L.append(f"  v_lshlrev_b32 v{t+2}, 16, v{t+4}")
    L.append(f"  v_add_f32 v{t}, v{t}, v{t+1}")
    L.append(f"  v_add_f32 v{t}, v{t}, v{t+2}")
    L.append(f"  v_cvt_pk_bf16_f32 v{t}, v{t}, v{V_ZERO}")
    L.append(f"  v_cndmask_b32_e64 v{V_D2}, v{t}, v{V_ZERO}, {sr(S_HIM,2)}")
    return L

def pos_loads(ent):
    t = V_T + 6
    return [f"  v_mad_u32_u16 v{t}, v{ent}, 8, 0",
            f"  v_mad_u32_u16 v{t+1}, v{ent}, 8, 0 op_sel:[1,0,0,0]",
            f"  buffer_load_dwordx2 {vr(V_PS,2)}, v{t}, {sr(S_WS,4)}, s{S_P4S} offen",
            f"  buffer_load_dwordx2 {vr(V_PD,2)}, v{t+1}, {sr(S_WS,4)}, s{S_P4D} offen"]

def gather_loads(b):
    L = [f"  v_mad_u32_u16 v{HS[b]+12}, v{ENT[b]}, s{S_C128}, v{V_HH16}",
         f"  v_lshl_add_u32 v{EA[b]}, v{EA[b]}, 5, v{V_HH16}"]
    for s in range(4):
        L.append(f"  buffer_load_dwordx4 {vr(HS[b]+4*s,4)}, v{HS[b]+12}, {sr(S_H,4)}, 0 offen offset:{32*s}")
    L.append(f"  buffer_load_dwordx4 {vr(EA[b],4)}, v{EA[b]}, {sr(S_EA,4)}, 0 offen")
    return L

def h_reads(ent):
    L = [f"  v_mad_u32_u16 v{V_H+12}, v{ent}, s{S_C144}, v{V_HB} op_sel:[1,0,0,0]"]
    for s in range(4):
        L.append(f"  ds_read_b128 {vr(V_H+4*s,4)}, v{V_H+12} offset:{L_HROW+32*s}")
    return L

def oh_set(ent, tmp):
    return [f"  v_mad_u32_u16 v{V_OHA}, v{ent}, s{S_C80}, v{V_OHW} op_sel:[1,0,0,0]",
            f"  v_mov_b32 v{tmp}, 0x3f80",
            f"  ds_write_b16 v{V_OHA}, v{tmp}"]

def mchain(b, nt, order):
    L = []
    d = vr(V_D1 + 16 * nt, 16)
    for q, k in enumerate(order):
        if k[0] == "H":
            a, w = V_H + 4 * int(k[1]), V_W + 4 * (2 * int(k[1]) + nt)
        elif k[0] == "S":
            a, w = HS[b] + 4 * int(k[1]), V_W + 4 * (2 * (4 + int(k[1])) + nt)
        elif k == "E":
            a, w = EA[b], V_W8 + 4 * nt
        else:
            a, w = V_D2, V_W9 + 2 * nt
        c = "0" if q == 0 else d
        L.append(f"  v_mfma_f32_32x32x16_bf16 {d}, {vr(a,4)}, {vr(w,4)}, {c}")
    return L

def u_mfmas():
    L = []
    for q in range(4):
        L.append(f"  v_mfma_f32_4x4x4_16b_bf16 {vr(V_PA,4)}, {vr(V_T+8+2*q,2)}, {vr(V_D1+16+2*q,2)}, {vr(V_PA,4)}")
    return L

def weave(v, m, pos):
    assert len(m) == len(pos)
    L = []
    j = 0
    for i in range(len(v) + 1):
        while j < len(m) and pos[j] == i:
            L.append(m[j])
            j += 1
        if i < len(v):
            L.append(v[i])
    assert j == len(m)
    return L

def phase_x(b, tag):
    M = mchain(b, 1, ["D", "H0", "H1", "H2", "H3", "E", "S0", "S1", "S2", "S3"])
    U = u_mfmas()
    L = [f"  ds_read_b32 v{ENT[b]}, v{V_LA} offset:4"]
    L += front_a(0, V_T)
    L.append("  s_waitcnt lgkmcnt(1)")
    for i in range(8):
        if i < 4:
            L.append(U[i])
        elif i in (4, 6):
            L.append(M[(i - 4) // 2])
        L += lut_pair(0, i)
    L.append(M[2])
    L += slow_branch(0, tag, V_T)
    L.append("  s_waitcnt vmcnt(5)")
    L += weave(pos_math(DF[b ^ 1]), M[3:6], [6, 14, 22])
    L.append("  s_waitcnt lgkmcnt(15)")
    L += pos_loads(ENT[b])
    L.append(M[6])
    L.append("  s_waitcnt lgkmcnt(8)")
    L += weave(back(0, 0), M[7:8], [6])
    L.append("  s_waitcnt lgkmcnt(0)")
    L += weave(back(0, 1), M[8:10], [1, 8])
    for l in L:
        A(l)

def phase_y(b, tag):
    M = mchain(b ^ 1, 0, ["S0", "S1", "S2", "S3", "E", "D", "H0", "H1", "H2", "H3"])
    L = h_reads(ENT[b ^ 1])
    L.append(f"  ds_read_b32 v{EA[b]}, v{V_LA}")
    L.append(f"  v_add_u32 v{V_LA}, 256, v{V_LA}")
    L += front_a(1, HS[b])
    L.append("  s_waitcnt vmcnt(2)")
    for i in range(8):
        if i % 2 == 0:
            L.append(M[i // 2])
        L += lut_pair(1, i)
    L.append(M[4])
    L += slow_branch(1, tag, HS[b])
    L.append("  s_waitcnt lgkmcnt(15)")
    L += gather_loads(b)
    L.append(M[5])
    L.append("  s_waitcnt lgkmcnt(8)")
    L += weave(back(1, 0), M[6:7], [8])
    L.append("  s_waitcnt lgkmcnt(0)")
    L += weave(back(1, 1), M[7:9], [4, 12])
    OH = V_D1 + 16
    L.append(f"  ds_read_b128 {vr(OH,4)}, v{V_OHR}")
    L.append(f"  ds_read_b128 {vr(OH+4,4)}, v{V_OHR} offset:32")
    L.append(f"  ds_write_b16 v{V_OHA}, v{V_ZERO}")
    L += oh_set(ENT[b ^ 1], OH + 8)
    L.append(M[9])
    t = V_T
    for r in range(8):
        L.append(f"  v_permlane16_swap_b32 v{t+r}, v{t+r+8}")
    for r in range(8):
        L.append(f"  v_add_f32 v{t+r}, v{t+r}, v{t+r+8}")
    G = []
    for tt in range(2):
        for mt in range(2):
            d = vr(V_ACC + 16 * mt, 16)
            G.append(f"  v_mfma_f32_32x32x16_bf16 {d}, {vr(V_MP+8*mt+4*tt,4)}, {vr(OH+4*tt,4)}, {d}")
    L.append("  s_waitcnt lgkmcnt(2)")
    L.append(G[0])
    for r in range(4):
        L.append(f"  v_add_f32_dpp v{t+r}, v{t+r}, v{t+r} row_mirror row_mask:0xf bank_mask:0x3")
    for r in range(4):
        L.append(f"  v_add_f32_dpp v{t+r}, v{t+r+4}, v{t+r+4} row_mirror row_mask:0xf bank_mask:0xc")
    L.append(G[1])
    for r in range(2):
        L.append(f"  v_cndmask_b32_e64 v{t+4+r}, v{t+r}, v{t+r+2}, {sr(S_B1M,2)}")
        L.append(f"  v_cndmask_b32_e64 v{t+6+r}, v{t+r+2}, v{t+r}, {sr(S_B1M,2)}")
    L.append(G[2])
    for r in range(2):
        L.append(f"  v_add_f32_dpp v{t+r}, v{t+6+r}, v{t+4+r} quad_perm:[2,3,0,1] row_mask:0xf bank_mask:0xf")
    L.append(f"  v_cndmask_b32_e64 v{t+4}, v{t}, v{t+1}, {sr(S_B0M,2)}")
    L.append(f"  v_cndmask_b32_e64 v{t+6}, v{t+1}, v{t}, {sr(S_B0M,2)}")
    L.append(G[3])
    L.append(f"  v_add_f32_dpp v{t}, v{t+6}, v{t+4} quad_perm:[1,0,3,2] row_mask:0xf bank_mask:0xf")
    L.append(f"  v_add_f32_dpp v{t+1}, v{t}, v{t} row_shl:4 row_mask:0x3 bank_mask:0x5")
    L.append(f"  v_add_f32_dpp v{t+1}, v{t}, v{t} row_shr:4 row_mask:0xc bank_mask:0xa")
    L.append(f"  v_cvt_pk_bf16_f32 v{t+1}, v{t+1}, v{t+1}")
    L.append(f"  v_lshlrev_b32 v{t+1}, 16, v{t+1}")
    for c in range(3):
        L.append(f"  v_mul_f32 v{t+2+c}, v{DF[b][c]}, v{t+1}")
    L.append(f"  v_cvt_pk_bf16_f32 v{t+5}, v{t+2}, v{t+3}")
    L.append(f"  v_cvt_pk_bf16_f32 v{t+6}, v{t+4}, v{t+4}")
    L.append(f"  s_mov_b64 exec, {sr(S_UM,2)}")
    L.append(f"  ds_write_b16 v{V_OHW}, v{t+5} offset:{L_U-L_OH}")
    L.append(f"  ds_write_b16_d16_hi v{V_OHW}, v{t+5} offset:{L_U-L_OH+64}")
    L.append(f"  ds_write_b16 v{V_OHW}, v{t+6} offset:{L_U-L_OH+128}")
    L.append("  s_mov_b64 exec, -1")
    L.append(f"  ds_read_b128 {vr(t+8,4)}, v{V_UR}")
    L.append(f"  ds_read_b128 {vr(t+12,4)}, v{V_UR} offset:32")
    for l in L:
        A(l)

def table_loads():
    A(f"  v_mul_u32_u24 v249, {NG*4}, v0")
    A(f"  s_lshl_b32 s61, s{S_G}, 2")
    A(f"  s_add_u32 s62, s61, {WS_TAB}")
    for j in range(1, 4):
        A(f"  s_add_u32 s{62+j}, s62, {64*NG*4*j}")
    for j in range(4):
        A(f"  buffer_load_dword v{128+j}, v249, {sr(S_WS,4)}, s{62+j} offen")

def table_scan():
    for j in range(4):
        A(f"  v_lshrrev_b32 v{152+j}, 16, v{128+j}")
        A(f"  v_and_b32 v{160+j}, 0xffff, v{128+j}")
    A(f"  v_mul_u32_u24 v249, {CH}, v0")
    for j in range(4):
        A(f"  v_add_u32 v{160+j}, v{160+j}, v249")
        if j:
            A(f"  v_add_u32 v{160+j}, {64*CH*j}, v{160+j}")
    A("  v_add_u32 v164, v152, v153")
    A("  v_add_u32 v165, v154, v155")
    A("  v_add_u32 v164, v164, v165")
    A("  v_mov_b32 v165, v164")
    wave_scan(165)
    A(f"  v_readlane_b32 s{S_T}, v165, 63")
    A("  v_sub_u32 v156, v165, v164")
    A("  v_add_u32 v157, v156, v152")
    A("  v_add_u32 v158, v157, v153")
    A("  v_add_u32 v159, v158, v154")

def k_main():
    name = "gather_scatter__cheap_equivariant_egnn__graph_kernel"
    A(f".globl {name}")
    A(".p2align 8")
    A(f".type {name},@function")
    A(f"{name}:")
    A("  s_cmp_ge_u32 s2, 256")
    A("  s_cbranch_scc1 K2_END")
    A("  s_and_b32 s3, s2, 7")
    A("  s_lshl_b32 s3, s3, 5")
    A("  s_lshr_b32 s61, s2, 3")
    A("  s_add_u32 s3, s3, s61")
    A(f"  s_cmp_ge_u32 s3, {NWG2}")
    A("  s_cbranch_scc1 K2_END")
    stamp(0, True)
    stamp(1)
    A("  s_load_dwordx4 s[4:7], s[0:1], 0")
    A("  s_load_dwordx2 s[8:9], s[0:1], 16")
    A("  s_load_dwordx2 s[10:11], s[0:1], 48")
    A("  s_load_dwordx2 s[12:13], s[0:1], 64")
    A("  s_load_dwordx2 s[14:15], s[0:1], 80")
    A("  v_lshrrev_b32 v248, 6, v0")
    A("  v_lshlrev_b32 v255, 4, v0")
    A("  v_readfirstlane_b32 s61, v248")
    A("  v_and_b32 v0, 63, v0")
    A("  s_lshl_b32 s3, s3, 3")
    A(f"  s_add_u32 s{S_G}, s3, s61")
    A(f"  s_mul_i32 s{S_NB}, s{S_G}, {GS}")
    A(f"  s_mul_i32 s{S_BASE}, s61, {WA}")
    A(f"  s_add_u32 s{S_BASE}, s{S_BASE}, 32768")
    A("  s_cmp_lt_u32 s61, 3")
    A("  s_cbranch_scc1 K2_B0")
    A(f"  s_add_u32 s{S_BASE}, s{S_BASE}, {65536 - 3*WA}")
    A("K2_B0:")
    A(f"  s_mov_b32 s{S_NL2E}, 0xbfb8aa3b")
    A(f"  s_mov_b32 s{S_NL2E+1}, 0xbfb8aa3b")
    A(f"  s_mov_b32 s{S_ONE2}, 1.0")
    A(f"  s_mov_b32 s{S_ONE2+1}, 1.0")
    A(f"  s_mov_b32 s{S_PERM}, 0x07060302")
    A(f"  s_mov_b32 s{S_HIM}, 0")
    A(f"  s_mov_b32 s{S_HIM+1}, -1")
    A(f"  s_mov_b32 s{S_B1M}, 0xcccccccc")
    A(f"  s_mov_b32 s{S_B1M+1}, 0xcccccccc")
    A(f"  s_mov_b32 s{S_B0M}, 0xaaaaaaaa")
    A(f"  s_mov_b32 s{S_B0M+1}, 0xaaaaaaaa")
    A(f"  s_mov_b32 s{S_MASKHI}, 0xffff0000")
    A(f"  s_mov_b32 s{S_UM}, 0x0f0f0f0f")
    A(f"  s_mov_b32 s{S_UM+1}, 0xf0f0f0f0")
    A(f"  s_movk_i32 s{S_C128}, 128")
    A(f"  s_movk_i32 s{S_C144}, {HSTR}")
    A(f"  s_movk_i32 s{S_C80}, {OSTR}")
    A(f"  s_mov_b32 s{S_P4S}, {WS_POS4}")
    A(f"  s_lshl_b32 s{S_P4D}, s{S_NB}, 3")
    A(f"  s_add_u32 s{S_P4D}, s{S_P4D}, {WS_POS4}")
    A("  s_waitcnt lgkmcnt(0)")
    srd(S_WS, 14, WS_SIZE)
    table_loads()
    srd(S_H, 4, N * 128)
    srd(S_POS, 6, N * 6)
    srd(S_EA, 8, E * 32)
    srd(S_OUT, 12, N * 128 + N * 6)
    srd(S_WXS, 10, 128)
    A(f"  v_and_b32 v{V_E}, 31, v0")
    A(f"  v_lshrrev_b32 v{V_HALF}, 5, v0")
    A("  v_lshlrev_b32 v250, 4, v0")
    A(f"  s_lshl_b32 s61, s{S_NB}, 7")
    for i in range(4):
        A(f"  buffer_load_dwordx4 {vr(132+4*i,4)}, v250, {sr(S_H,4)}, s61 offen offset:{1024*i}")
    A(f"  v_lshlrev_b32 v251, 1, v{V_E}")
    A(f"  buffer_load_ushort v{V_WX0}, v251, {sr(S_WXS,4)}, 0 offen")
    A(f"  buffer_load_ushort v{V_WX1}, v251, {sr(S_WXS,4)}, 0 offen offset:64")
    A(f"  s_mov_b32 s61, {WS_LUT}")
    for i in range(8):
        A(f"  buffer_load_dwordx4 {vr(96+4*i,4)}, v255, {sr(S_WS,4)}, s61 offen")
        if i < 7:
            A("  s_add_u32 s61, s61, 8192")
    A(f"  s_mov_b32 s61, {WS_WF}")
    for f in range(20):
        if f and f % 4 == 0:
            A("  s_add_u32 s61, s61, 4096")
        if f < 18:
            dstr = V_W + 4 * f if f < 16 else V_W8 + 4 * (f - 16)
            A(f"  buffer_load_dwordx4 {vr(dstr,4)}, v250, {sr(S_WS,4)}, s61 offen offset:{1024*(f%4)}")
        else:
            A(f"  buffer_load_dword v{V_W9+2*(f-18)}, v250, {sr(S_WS,4)}, s61 offen offset:{1024*(f%4)}")
    e = V_E
    A(f"  v_lshlrev_b32 v{V_HH16}, 4, v{V_HALF}")
    A(f"  v_add_u32 v{V_HB}, s{S_BASE}, v{V_HH16}")
    A(f"  v_lshrrev_b32 v248, 4, v{e}")
    A(f"  v_lshlrev_b32 v{V_OHW}, 5, v248")
    A(f"  v_bfe_u32 v248, v{e}, 2, 1")
    A(f"  v_lshl_add_u32 v{V_OHW}, v248, 4, v{V_OHW}")
    A(f"  v_bfe_u32 v248, v{e}, 3, 1")
    A(f"  v_lshl_add_u32 v{V_OHW}, v248, 3, v{V_OHW}")
    A(f"  v_and_b32 v248, 3, v{e}")
    A(f"  v_lshl_add_u32 v{V_OHW}, v248, 1, v{V_OHW}")
    A(f"  v_add_u32 v{V_OHW}, {L_OH}, v{V_OHW}")
    A(f"  v_add_u32 v{V_OHW}, s{S_BASE}, v{V_OHW}")
    A(f"  v_min_u32 v{V_OHR}, 25, v{e}")
    A(f"  v_mul_u32_u24 v{V_OHR}, {OSTR}, v{V_OHR}")
    A(f"  v_add_u32 v{V_OHR}, v{V_OHR}, v{V_HB}")
    A(f"  v_add_u32 v{V_OHR}, {L_OH}, v{V_OHR}")
    A(f"  v_lshl_add_u32 v{V_UR}, v248, 6, v{V_HB}")
    A(f"  v_add_u32 v{V_UR}, {L_U}, v{V_UR}")
    for i in range(1, 4):
        A(f"  v_mov_b32 v{V_D2+i}, 0")
    for i in range(4):
        A(f"  v_mov_b32 v{148+i}, 0")
    A(f"  v_add_u32 v252, s{S_BASE}, v250")
    for i in range(2):
        A(f"  ds_write_b128 v252, v[148:151] offset:{L_OH+1024*i}")
    A(f"  v_cmp_gt_u32 vcc, 17, v0")
    A("  s_and_saveexec_b64 s[66:67], vcc")
    A(f"  ds_write_b128 v252, v[148:151] offset:{L_OH+2048}")
    A("  s_mov_b64 exec, s[66:67]")
    A(f"  v_cmp_gt_u32 vcc, 8, v0")
    A("  s_and_saveexec_b64 s[66:67], vcc")
    A(f"  ds_write_b128 v252, v[148:151] offset:{L_HROW+25*HSTR}")
    A("  s_mov_b64 exec, s[66:67]")
    A("  s_waitcnt vmcnt(34)")
    table_scan()
    stamp(2)
    A("  v_lshrrev_b32 v249, 3, v0")
    A(f"  v_mul_u32_u24 v249, {HSTR}, v249")
    A("  v_and_b32 v251, 7, v0")
    A("  v_lshl_add_u32 v249, v251, 4, v249")
    A(f"  v_add_u32 v249, s{S_BASE}, v249")
    A("  s_waitcnt vmcnt(30)")
    for i in range(3):
        A(f"  ds_write_b128 v249, {vr(132+4*i,4)} offset:{L_HROW+8*HSTR*i}")
    A(f"  v_cmp_gt_u32 vcc, 8, v0")
    A("  s_and_saveexec_b64 s[66:67], vcc")
    A(f"  ds_write_b128 v249, {vr(144,4)} offset:{L_HROW+8*HSTR*3}")
    A("  s_mov_b64 exec, s[66:67]")
    A("  s_waitcnt vmcnt(28)")
    A(f"  v_lshlrev_b32 v{V_WX0}, 16, v{V_WX0}")
    A(f"  v_lshlrev_b32 v{V_WX1}, 16, v{V_WX1}")
    A(f"  s_mov_b32 s{S_WIN}, 0")
    A("  s_branch K2_R0")
    A("K2_ROUND:")
    table_loads()
    A("  s_waitcnt vmcnt(0)")
    table_scan()
    A("K2_R0:")
    A(f"  s_sub_u32 s{S_N}, s{S_T}, s{S_WIN}")
    A(f"  s_min_u32 s{S_N}, s{S_N}, {CAP}")
    A(f"  s_add_u32 s61, s{S_WIN}, {CAP}")
    for j in range(4):
        A(f"  v_max_u32 v164, s{S_WIN}, v{156+j}")
        A(f"  v_add_u32 v165, v{156+j}, v{152+j}")
        A(f"  v_min_u32 v165, s61, v165")
        A(f"  v_sub_u32 v166, v164, v{156+j}")
        A(f"  v_add_u32 v166, v166, v{160+j}")
        A(f"  v_subrev_u32 v167, s{S_WIN}, v164")
        A(f"  v_lshl_add_u32 v167, v167, 3, s{S_BASE}")
        A(f"K2_EXP{j}:")
        A("  v_cmp_lt_u32 vcc, v164, v165")
        A(f"  s_cbranch_vccz K2_EXPD{j}")
        A("  s_mov_b64 exec, vcc")
        A(f"  ds_write_b32 v167, v166 offset:{L_LIST}")
        A("  v_add_u32 v164, 1, v164")
        A("  v_add_u32 v166, 1, v166")
        A("  v_add_u32 v167, 8, v167")
        A(f"  s_branch K2_EXP{j}")
        A(f"K2_EXPD{j}:")
        A("  s_mov_b64 exec, -1")
    stamp(3)
    A(f"  v_lshl_add_u32 v249, v0, 3, s{S_BASE}")
    for i in range(CAP // 64):
        A(f"  ds_read_b32 v{164+i}, v249 offset:{L_LIST+512*i}")
    A("  s_waitcnt lgkmcnt(0)")
    for i in range(CAP // 64):
        A(f"  v_lshlrev_b32 v{164+i}, 3, v{164+i}")
        A(f"  buffer_load_dwordx2 {vr(176+2*i,2)}, v{164+i}, {sr(S_WS,4)}, 0 offen")
    A(f"  s_cmp_lg_u32 s{S_WIN}, 0")
    A("  s_cbranch_scc1 K2_R1")
    A("  s_waitcnt vmcnt(28)")
    A("  v_add_u32 v254, 0x10000, v255")
    for i in range(8):
        A(f"  ds_write_b128 v{255 if i < 4 else 254}, {vr(96+4*i,4)} offset:{8192*(i&3)}")
    A("  s_waitcnt lgkmcnt(0)")
    for i in range(32):
        A(f"  v_mov_b32 v{V_ACC+i}, 0")
    for i in range(4):
        A(f"  v_mov_b32 v{V_PA+i}, 0")
    A("  s_barrier")
    A("K2_R1:")
    for i in range(CAP // 64):
        A(f"  s_waitcnt vmcnt({CAP//64-1-i})")
        A(f"  ds_write_b64 v249, {vr(176+2*i,2)} offset:{L_LIST+512*i}")
    A(f"  s_cmp_eq_u32 s{S_T}, 0")
    A("  s_cbranch_scc1 K2_EPI")
    A(f"  s_lshl_b32 s61, s{S_N}, 3")
    A("  v_add_u32 v249, s61, v249")
    A("  v_mov_b32 v164, 0")
    A(f"  v_mov_b32 v165, {GS << 16}")
    A(f"  ds_write_b64 v249, v[164:165] offset:{L_LIST}")
    A("  s_mov_b32 exec_hi, 0")
    A(f"  ds_write_b64 v249, v[164:165] offset:{L_LIST+512}")
    A("  s_mov_b32 exec_hi, -1")
    A(f"  s_add_u32 s{S_NT}, s{S_N}, 31")
    A(f"  s_lshr_b32 s{S_NT}, s{S_NT}, 5")
    A(f"  s_mov_b32 s{S_TC}, 0")
    stamp(4)
    with seg() as PRO:
        A(f"  v_and_b32 v{V_LA}, 31, v0")
        A(f"  v_lshl_add_u32 v{V_LA}, v{V_LA}, 3, s{S_BASE}")
        A(f"  ds_read_b32 v{ENT[0]}, v{V_LA} offset:4")
        A(f"  ds_read_b32 v{EA[0]}, v{V_LA}")
        A(f"  ds_read_b32 v{ENT[1]}, v{V_LA} offset:260")
        A(f"  ds_read_b32 v{EA[1]}, v{V_LA} offset:256")
        A(f"  v_add_u32 v{V_LA}, 512, v{V_LA}")
        for i in range(8):
            A(f"  v_mov_b32 v{V_T+8+i}, 0")
            A(f"  v_mov_b32 v{V_D1+16+i}, 0")
        A("  s_waitcnt lgkmcnt(2)")
        for l in pos_loads(ENT[0]) + gather_loads(0) + h_reads(ENT[0]) + oh_set(ENT[0], V_T):
            A(l)
        A("  s_waitcnt vmcnt(5)")
        for l in pos_math(DF[0]):
            A(l)
        A("  s_waitcnt lgkmcnt(5)")
        for l in pos_loads(ENT[1]) + gather_loads(1):
            A(l)
        A("  s_waitcnt vmcnt(7) lgkmcnt(0)")
        for l in mchain(0, 0, ["S0", "S1", "S2", "S3", "E", "D", "H0", "H1", "H2", "H3"]):
            A(l)
        A("  s_nop 7")
        A("  s_nop 3")
    with seg() as X0:
        phase_x(0, "0a")
    with seg() as Y0:
        phase_y(0, "0b")
        A(f"  s_add_u32 s{S_TC}, s{S_TC}, 1")
        A(f"  s_cmp_ge_u32 s{S_TC}, s{S_NT}")
        A("  s_cbranch_scc1 K2_LOOPD")
    with seg() as X1:
        phase_x(1, "1a")
    with seg() as Y1:
        phase_y(1, "1b")
        A(f"  s_add_u32 s{S_TC}, s{S_TC}, 1")
        A(f"  s_cmp_lt_u32 s{S_TC}, s{S_NT}")
        A("  s_cbranch_scc1 K2_LOOP")
    with seg() as TAIL:
        A("  s_waitcnt lgkmcnt(0)")
        for l in u_mfmas():
            A(l)
        A(f"  ds_write_b16 v{V_OHA}, v{V_ZERO}")
        A("  s_waitcnt vmcnt(0)")
        A(f"  s_add_u32 s{S_WIN}, s{S_WIN}, {CAP}")
        A(f"  s_cmp_lt_u32 s{S_WIN}, s{S_T}")
        A("  s_cbranch_scc1 K2_ROUND")
    with seg() as EPI:
        A("K2_EPI:")
        A("  s_waitcnt vmcnt(0)")
        stamp(5)
        A("  v_lshlrev_b32 v250, 4, v0")
        A(f"  s_mov_b32 s61, {WS_WF+20*1024}")
        for f in range(16):
            if f and f % 4 == 0:
                A("  s_add_u32 s61, s61, 4096")
            A(f"  buffer_load_dwordx4 {vr(V_W+4*f,4)}, v250, {sr(S_WS,4)}, s61 offen offset:{1024*(f%4)}")
        A(f"  v_and_b32 v{e}, 31, v0")
        A(f"  v_min_u32 v249, 25, v{e}")
        A(f"  v_mul_u32_u24 v249, {HSTR}, v249")
        A(f"  v_add_u32 v251, v249, v{V_HB}")
        for s in range(4):
            A(f"  ds_read_b128 {vr(V_T+4*s,4)}, v251 offset:{L_HROW+32*s}")
        A(f"  v_lshrrev_b32 v252, 1, v{V_HH16}")
        A("  v_add_u32 v252, v249, v252")
        A(f"  v_add_u32 v252, s{S_BASE}, v252")
        for ot in range(2):
            for q in range(4):
                A(f"  ds_read_b64 {vr(192+8*ot+2*q,2)}, v252 offset:{L_HROW+64*ot+16*q}")
        for c in range(3):
            A(f"  v_mov_b32 v{218+c}, v{V_PA+c}")
        for c in range(3):
            A(f"  v_permlane32_swap_b32 v{218+c}, v{V_PA+c}")
        for c in range(3):
            A(f"  v_add_f32 v{218+c}, v{218+c}, v{V_PA+c}")
        A(f"  v_add_u32 v230, s{S_NB}, v{e}")
        A("  v_mul_u32_u24 v231, 6, v230")
        for c in range(3):
            A(f"  buffer_load_ushort v{222+c}, v231, {sr(S_POS,4)}, 0 offen offset:{2*c}")
        for mt in range(2):
            for i in range(8):
                A(f"  v_cvt_pk_bf16_f32 v{V_MP+8*mt+i}, v{V_ACC+16*mt+2*i}, v{V_ACC+16*mt+2*i+1}")
        A("  s_waitcnt vmcnt(3) lgkmcnt(0)")
        bops = [vr(V_T + 4 * s, 4) for s in range(4)] + [vr(V_MP + 4 * s, 4) for s in range(4)]
        for ks in range(8):
            for ot in range(2):
                d = vr(V_D1 + 16 * ot, 16)
                c = "0" if ks == 0 else d
                A(f"  v_mfma_f32_32x32x16_bf16 {d}, {vr(V_W+4*(2*ks+ot),4)}, {bops[ks]}, {c}")
        A("  s_nop 7")
        A("  s_nop 7")
        def post2(i, r):
            A(f"  v_cvt_pk_bf16_f32 v{V_T}, v{r}, v{r+1}")
            A(f"  v_lshlrev_b32 v{r}, 16, v{V_T}")
            A(f"  v_and_b32 v{r+1}, s{S_MASKHI}, v{V_T}")
            A(f"  v_lshlrev_b32 v{V_T+2}, 16, v{192+i}")
            A(f"  v_and_b32 v{V_T+3}, s{S_MASKHI}, v{192+i}")
            A(f"  v_pk_add_f32 {vr(r,2)}, {vr(r,2)}, {vr(V_T+2,2)}")
            A(f"  v_cvt_pk_bf16_f32 v{V_MP+i}, v{r}, v{r+1}")
        silu_pairs(V_D1, 16, post2)
        A(f"  v_cmp_gt_u32 vcc, {GS}, v{e}")
        A("  s_and_saveexec_b64 s[66:67], vcc")
        A(f"  v_lshrrev_b32 v252, 1, v{V_HH16}")
        A("  v_lshl_add_u32 v252, v230, 7, v252")
        for ot in range(2):
            for q in range(4):
                A(f"  buffer_store_dwordx2 {vr(V_MP+8*ot+2*q,2)}, v252, {sr(S_OUT,4)}, 0 offen offset:{64*ot+16*q}")
        A("  s_waitcnt vmcnt(8)")
        A(f"  v_cvt_pk_bf16_f32 v226, v218, v219")
        A(f"  v_cvt_pk_bf16_f32 v227, v220, v220")
        A(f"  v_lshlrev_b32 v218, 16, v226")
        A(f"  v_and_b32 v219, s{S_MASKHI}, v226")
        A(f"  v_lshlrev_b32 v220, 16, v227")
        for c in range(3):
            A(f"  v_lshlrev_b32 v{222+c}, 16, v{222+c}")
            A(f"  v_add_f32 v{222+c}, v{222+c}, v{218+c}")
            A(f"  v_cvt_pk_bf16_f32 v{222+c}, v{222+c}, v{222+c}")
        A("  v_cmp_gt_u32 vcc, 32, v0")
        A("  s_and_b64 exec, exec, vcc")
        A(f"  s_mov_b32 s61, {N*128}")
        for c in range(3):
            A(f"  buffer_store_short v{222+c}, v231, {sr(S_OUT,4)}, s61 offen offset:{2*c}")
        if STAMP:
            A("  s_waitcnt vmcnt(0)")
            stamp(6)
            stamp(7, True)
            A("  s_mov_b64 exec, 1")
            for i in range(8):
                A(f"  v_mov_b32 v{16+i}, s{70+2*i}")
            A(f"  v_mov_b32 v24, s{S_T}")
            A("  v_mov_b32 v25, s2")
            A(f"  s_lshl_b32 s61, s{S_G}, 6")
            A("  s_add_u32 s61, s61, 0x1000000")
            A("  v_mov_b32 v30, 0")
            A(f"  buffer_store_dwordx4 v[16:19], v30, {sr(S_WS,4)}, s61 offen")
            A(f"  buffer_store_dwordx4 v[20:23], v30, {sr(S_WS,4)}, s61 offen offset:16")
            A(f"  buffer_store_dwordx2 v[24:25], v30, {sr(S_WS,4)}, s61 offen offset:32")
    traces = [PRO + X0 + Y0 + X1 + Y1 + X0 + Y0 + X1 + Y1, X0 + Y0 + TAIL + EPI, X1 + Y1 + TAIL + EPI]
    while any([pad_trace(t) for t in traces]):
        pass
    emit(PRO)
    A("K2_LOOP:")
    emit(X0); emit(Y0); emit(X1); emit(Y1)
    A("K2_LOOPD:")
    emit(TAIL)
    emit(EPI)
    A("K2_END:")
    A("  s_endpgm")
    for l in SLOW:
        A(l)
    npad = sum(i.pre for i in X0 + Y0)
    nins = sum(1 for i in X0 + Y0 if classify(i.t))
    sys.stderr.write(f"tile instrs {nins}, pad states {npad}: " + ", ".join(f"{i.pre}@{i.t.split()[0]}" for i in X0 + Y0 if i.pre) + "\n")

LDS_MAIN = 163840
A(HEADER.rstrip("\n"))
A(f"; @launch kernel=egnn_sort_kernel grid=({NCH},1,1) block=(1024,1,1) lds=8448")
A(f"; @launch kernel=gather_scatter__cheap_equivariant_egnn__graph_kernel grid=(256,1,1) block=(512,1,1) lds={LDS_MAIN}")
A('.amdgcn_target "amdgcn-amd-amdhsa--gfx950"')
A(".text")
k_sort()
k_main()
A('.section .rodata,"a"')
for nm, nv in (("egnn_sort_kernel", 80), ("gather_scatter__cheap_equivariant_egnn__graph_kernel", 256)):
    A(".p2align 6")
    A(f".amdhsa_kernel {nm}")
    A(f"  .amdhsa_next_free_vgpr {nv}")
    A("  .amdhsa_next_free_sgpr 102")
    A(f"  .amdhsa_accum_offset {nv}")
    A("  .amdhsa_group_segment_fixed_size 0")
    A("  .amdhsa_kernarg_size 88")
    A("  .amdhsa_user_sgpr_count 2")
    A("  .amdhsa_user_sgpr_kernarg_segment_ptr 1")
    A("  .amdhsa_system_sgpr_workgroup_id_x 1")
    A("  .amdhsa_float_denorm_mode_32 3")
    A(".end_amdhsa_kernel")
print("\n".join(render(out)))
```

```python
import sys, os, re

N = 50000
E = 800000
NCH = 256
CH = E // NCH
GS = 25
NG = N // GS
CAP = 512

WS_REC = 0
WS_TAB = 0x800000
WS_WF = 0xC00000
WS_LUT = 0xC10000
WS_POS4 = 0xC20000
NWG2 = 250
STAMP = int(os.environ.get("STAMP", "0"))
WS_SIZE = 0x2000000 if STAMP else 0x1000000

L_LIST = 0
L_HROW = (CAP + 96) * 8
HSTR = 144
L_OH = L_HROW + 25 * HSTR + 128
OSTR = 80
L_U = L_OH + 25 * OSTR + 64
WA = L_U + 256
assert L_HROW % 16 == 0 and L_OH % 16 == 0 and L_U % 16 == 0 and 3 * WA <= 32768 and 5 * WA <= 65536


class I:
    __slots__ = ("t", "pre")
    def __init__(s, t):
        s.t = t
        s.pre = 0

out = []
CUR = [out]
def A(s=""):
    CUR[-1].append(I(s))

class seg:
    def __enter__(s):
        s.l = []
        CUR.append(s.l)
        return s.l
    def __exit__(s, *a):
        CUR.pop()

def emit(l):
    CUR[-1].extend(l)

def vr(b, n=1):
    return f"v{b}" if n == 1 else f"v[{b}:{b+n-1}]"
def sr(b, n=1):
    return f"s{b}" if n == 1 else f"s[{b}:{b+n-1}]"

HEADER = open(sys.argv[1]).read() if len(sys.argv) > 1 else ""

def srd(d, b, nbytes):
    A(f"  s_mov_b32 s{d}, s{b}")
    A(f"  s_and_b32 s{d+1}, s{b+1}, 0xffff")
    A(f"  s_mov_b32 s{d+2}, {nbytes}")
    A(f"  s_mov_b32 s{d+3}, 0x00020000")

def stamp(i, real=False):
    if not STAMP:
        return
    A(f"  s_{'memrealtime' if real else 'memtime'} s[{70+2*i}:{71+2*i}]")
    A("  s_waitcnt lgkmcnt(0)")

def wave_scan(v):
    for sh in (1, 2, 4, 8):
        A("  s_nop 1")
        A(f"  v_add_u32_dpp v{v}, v{v}, v{v} row_shr:{sh} row_mask:0xf bank_mask:0xf")
    A("  s_nop 1")
    A(f"  v_add_u32_dpp v{v}, v{v}, v{v} row_bcast:15 row_mask:0xa bank_mask:0xf")
    A("  s_nop 1")
    A(f"  v_add_u32_dpp v{v}, v{v}, v{v} row_bcast:31 row_mask:0xc bank_mask:0xf")
    A("  s_nop 1")

RE_V = re.compile(r"^v(\d+)$|^v\[(\d+):(\d+)\]$")
def regs_of(tok):
    tok = tok.strip().split(" ")[0]
    m = RE_V.match(tok)
    if not m:
        return set()
    if m.group(1) is not None:
        return {int(m.group(1))}
    return set(range(int(m.group(2)), int(m.group(3)) + 1))

def classify(t):
    t = t.split(";")[0].strip()
    if not t or t.endswith(":") or t.startswith("."):
        return None
    p = t.split(None, 1)
    mn = p[0]
    ops = [o.strip() for o in p[1].split(",")] if len(p) > 1 else []
    R = [regs_of(o) for o in ops]
    allr = set().union(*R) if R else set()
    d = dict(mn=mn, rd=set(), wr=set(), kind="s", ws=1, ab=set(), c=set())
    if mn == "s_nop":
        d["ws"] = int(ops[0]) + 1
    elif mn.startswith("s_"):
        pass
    elif mn.startswith("v_mfma"):
        d["kind"] = "mfma2" if "4x4x4" in mn else "mfma8"
        d["wr"] = R[0]
        d["ab"] = R[1] | R[2]
        d["c"] = R[3]
        d["rd"] = R[1] | R[2] | R[3]
    elif mn.startswith("ds_read") or mn.startswith("ds_bpermute"):
        d["kind"] = "mem"
        d["wr"] = R[0]
        d["rd"] = set().union(*R[1:]) | (R[0] if "d16" in mn else set())
    elif mn.startswith("ds_") or mn.startswith("buffer_store"):
        d["kind"] = "mem"
        d["rd"] = allr
    elif mn.startswith("buffer_load"):
        d["kind"] = "mem"
        d["wr"] = R[0]
        d["rd"] = set().union(*R[1:])
    elif mn.startswith("v_cmp") or mn.startswith("v_readlane") or mn.startswith("v_readfirstlane"):
        d["kind"] = "valu"
        d["rd"] = allr
    elif "swap" in mn:
        d["kind"] = "dpp"
        d["rd"] = allr
        d["wr"] = allr
    elif mn.startswith("v_"):
        d["kind"] = "dpp" if "_dpp" in mn else "valu"
        d["wr"] = R[0]
        d["rd"] = set().union(*R[1:]) if len(R) > 1 else set()
        if "_dpp" in mn or "fmac" in mn:
            d["rd"] |= R[0]
    else:
        raise ValueError(t)
    return d

def pad_trace(tr):
    changed = False
    hist = []
    pos = 0
    for ins in tr:
        d = classify(ins.t)
        if d is None:
            continue
        pos += ins.pre
        need = 0
        for (p, pp) in reversed(hist):
            dist = pos - pp - 1
            if dist > 24:
                break
            req = 0
            if p["kind"] in ("mfma8", "mfma2"):
                full = 12 if p["kind"] == "mfma8" else 7
                if d["kind"] in ("mfma8", "mfma2"):
                    if p["wr"] & d["ab"]:
                        req = full
                    elif p["wr"] & d["c"]:
                        req = (0 if p["kind"] == "mfma8" else 2) if p["wr"] == d["c"] else full
                    elif p["wr"] & d["wr"]:
                        req = full
                elif d["kind"] != "s":
                    if p["wr"] & (d["rd"] | d["wr"]):
                        req = full
                    elif p["c"] & d["wr"]:
                        req = full
            elif p["kind"] in ("valu", "dpp"):
                if d["kind"] in ("mfma8", "mfma2") and p["wr"] & d["rd"]:
                    req = 2
                elif d["kind"] == "dpp" and p["wr"] & d["rd"]:
                    req = 2
            need = max(need, req - dist)
        if need > 0:
            ins.pre += need
            pos += need
            changed = True
        hist.append((d, pos))
        pos += d["ws"]
    return changed

def render(l):
    res = []
    for ins in l:
        n = ins.pre
        while n > 0:
            k = min(n, 8)
            res.append(f"  s_nop {k-1}")
            n -= k
        res.append(ins.t)
    return res

def k_sort():
    A(".globl egnn_sort_kernel")
    A(".p2align 8")
    A(".type egnn_sort_kernel,@function")
    A("egnn_sort_kernel:")
    A(f"  s_cmp_ge_u32 s2, {NCH}")
    A("  s_cbranch_scc1 K1_END")
    A("  s_load_dwordx4 s[4:7], s[0:1], 24")
    A("  s_load_dwordx2 s[8:9], s[0:1], 40")
    A("  s_load_dwordx2 s[10:11], s[0:1], 56")
    A("  s_load_dwordx2 s[12:13], s[0:1], 80")
    A("  s_load_dwordx2 s[14:15], s[0:1], 8")
    A("  v_lshlrev_b32 v1, 3, v0")
    A("  v_mov_b32 v2, 0")
    A("  v_mov_b32 v3, 0")
    A("  ds_write_b64 v1, v[2:3]")
    A(f"  s_mul_i32 s3, s2, {CH}")
    A("  s_movk_i32 s28, 4096")
    A("  s_movk_i32 s29, 8192")
    A("  s_movk_i32 s30, 12288")
    A("  s_mov_b32 s31, 0x51EB851F")
    A("  s_waitcnt lgkmcnt(0)")
    srd(16, 4, E * 4)
    srd(20, 6, E * 4)
    srd(24, 12, WS_SIZE)
    srd(60, 14, N * 6)
    A("  v_add_u32 v4, s3, v0")
    A("  v_lshlrev_b32 v5, 2, v4")
    so = ["0", "s28", "s29", "s30"]
    for k in range(4):
        A(f"  buffer_load_dword v{10+k}, v5, s[20:23], {so[k]} offen")
    for k in range(4):
        A(f"  buffer_load_dword v{14+k}, v5, s[16:19], {so[k]} offen")
    A("  s_mul_i32 s64, s2, 196")
    A("  v_add_u32 v76, s64, v0")
    A("  v_mul_u32_u24 v77, 6, v76")
    A("  v_lshlrev_b32 v76, 3, v76")
    A("  buffer_load_ushort v78, v77, s[60:63], 0 offen")
    A("  buffer_load_ushort v79, v77, s[60:63], 0 offen offset:2")
    A("  buffer_load_ushort v77, v77, s[60:63], 0 offen offset:4")
    A("  v_mov_b32 v6, 1")
    A("  s_barrier")
    A("  s_waitcnt vmcnt(7)")
    for k in range(4):
        A(f"  v_mul_hi_u32 v{18+k}, v{10+k}, s31")
    for k in range(4):
        A(f"  v_lshrrev_b32 v{18+k}, 3, v{18+k}")
    for k in range(4):
        A(f"  v_mul_u32_u24 v{22+k}, {GS}, v{18+k}")
    for k in range(4):
        A(f"  v_sub_u32 v{22+k}, v{10+k}, v{22+k}")
    for k in range(4):
        A(f"  v_lshlrev_b32 v{18+k}, 2, v{18+k}")
    for k in range(3):
        A(f"  ds_add_rtn_u32 v{26+k}, v{18+k}, v6")
    A(f"  v_cmp_gt_u32 vcc, {CH - 3072}, v0")
    A("  s_and_saveexec_b64 s[32:33], vcc")
    A("  s_cbranch_execz K1_A")
    A("  ds_add_rtn_u32 v29, v21, v6")
    A("K1_A:")
    A("  s_mov_b64 exec, s[32:33]")
    A("  s_waitcnt lgkmcnt(0)")
    A("  s_barrier")
    A("  ds_read_b64 v[30:31], v1")
    A("  s_waitcnt lgkmcnt(0)")
    A("  v_add_u32 v32, v30, v31")
    A("  v_mov_b32 v33, v32")
    wave_scan(33)
    A("  v_lshrrev_b32 v34, 6, v0")
    A("  v_lshlrev_b32 v35, 2, v34")
    A("  v_and_b32 v36, 63, v0")
    A("  v_cmp_eq_u32 vcc, 63, v36")
    A("  s_and_saveexec_b64 s[32:33], vcc")
    A("  ds_write_b32 v35, v33 offset:8192")
    A("  s_mov_b64 exec, s[32:33]")
    A("  s_waitcnt lgkmcnt(0)")
    A("  s_barrier")
    A("  v_and_b32 v37, 15, v0")
    A("  v_lshlrev_b32 v38, 2, v37")
    A("  ds_read_b32 v39, v38 offset:8192")
    A("  v_cmp_lt_u32 vcc, v37, v34")
    A("  s_waitcnt lgkmcnt(0)")
    A("  v_cndmask_b32 v39, 0, v39, vcc")
    for sh in (1, 2, 4, 8):
        A("  s_nop 1")
        A(f"  v_add_u32_dpp v39, v39, v39 row_shr:{sh} row_mask:0xf bank_mask:0xf")
    A("  s_nop 1")
    A("  v_readlane_b32 s34, v39, 15")
    A("  v_sub_u32 v40, v33, v32")
    A("  s_nop 1")
    A("  v_add_u32 v40, s34, v40")
    A("  v_add_u32 v41, v40, v30")
    A("  ds_write_b64 v1, v[40:41]")
    A("  v_lshl_or_b32 v42, v30, 16, v40")
    A("  v_lshl_or_b32 v43, v31, 16, v41")
    A("  s_lshl_b32 s35, s2, 5")
    A(f"  s_add_u32 s35, s35, {WS_TAB}")
    A("  v_lshrrev_b32 v56, 2, v0")
    A("  v_lshlrev_b32 v56, 13, v56")
    A("  v_and_b32 v57, 3, v0")
    A("  v_lshl_add_u32 v56, v57, 3, v56")
    A(f"  v_cmp_gt_u32 vcc, {NG//2}, v0")
    A("  s_and_saveexec_b64 s[32:33], vcc")
    A("  s_cbranch_execz K1_B")
    A("  buffer_store_dwordx2 v[42:43], v56, s[24:27], s35 offen")
    A("K1_B:")
    A("  s_mov_b64 exec, s[32:33]")
    A("  s_waitcnt lgkmcnt(0)")
    A("  s_barrier")
    for k in range(4):
        A(f"  ds_read_b32 v{44+k}, v{18+k}")
    A("  s_waitcnt vmcnt(0) lgkmcnt(0)")
    A("  s_lshl_b32 s36, s3, 3")
    for k in range(4):
        A(f"  v_add_u32 v{44+k}, v{44+k}, v{26+k}")
        A(f"  v_lshlrev_b32 v{44+k}, 3, v{44+k}")
        A(f"  v_add_u32 v{48+2*k}, {1024*k}, v4")
        A(f"  v_lshl_or_b32 v{49+2*k}, v{22+k}, 16, v{14+k}")
    for k in range(3):
        A(f"  buffer_store_dwordx2 v[{48+2*k}:{49+2*k}], v{44+k}, s[24:27], s36 offen")
    A(f"  v_cmp_gt_u32 vcc, {CH - 3072}, v0")
    A("  s_and_saveexec_b64 s[32:33], vcc")
    A("  s_cbranch_execz K1_C")
    A("  buffer_store_dwordx2 v[54:55], v47, s[24:27], s36 offen")
    A("K1_C:")
    A("  s_mov_b64 exec, s[32:33]")
    A("  v_lshl_or_b32 v78, v79, 16, v78")
    A("  v_mov_b32 v79, v77")
    A(f"  s_mov_b32 s64, {WS_POS4}")
    A("  v_cmp_gt_u32 vcc, 196, v0")
    A("  s_and_saveexec_b64 s[32:33], vcc")
    A("  s_cbranch_execz K1_D")
    A("  buffer_store_dwordx2 v[78:79], v76, s[24:27], s64 offen")
    A("K1_D:")
    A("  s_mov_b64 exec, s[32:33]")
    A("  s_cmp_lt_u32 s2, 64")
    A("  s_cbranch_scc1 K1_NOLUT")
    A("  s_cmp_ge_u32 s2, 96")
    A("  s_cbranch_scc1 K1_END")
    A("  s_sub_u32 s37, s2, 64")
    A("  s_lshl_b32 s37, s37, 10")
    A("  v_add_u32 v60, s37, v0")
    A("  v_and_b32 v61, 0x3fff, v60")
    A("  v_lshrrev_b32 v62, 14, v60")
    A("  v_lshl_or_b32 v61, v62, 15, v61")
    A("  v_lshlrev_b32 v61, 16, v61")
    A("  v_mul_f32 v61, 0x42800000, v61")
    A("  v_mul_f32 v62, 0xbfb8aa3b, v61")
    A("  v_exp_f32 v62, v62")
    A("  s_nop 0")
    A("  v_add_f32 v62, 1.0, v62")
    A("  v_rcp_f32 v62, v62")
    A("  s_nop 0")
    A("  v_mul_f32 v61, v61, v62")
    A("  v_cvt_pk_bf16_f32 v61, v61, v61")
    A("  v_lshlrev_b32 v60, 1, v60")
    A(f"  s_mov_b32 s37, {WS_LUT}")
    A("  buffer_store_short v61, v60, s[24:27], s37 offen")
    A("  s_branch K1_END")
    A("K1_NOLUT:")
    A("  s_cmp_ge_u32 s2, 36")
    A("  s_cbranch_scc1 K1_END")
    A("  v_readfirstlane_b32 s37, v34")
    A("  s_nop 3")
    A("  s_cmp_lg_u32 s37, 0")
    A("  s_cbranch_scc1 K1_END")
    A("  s_cmp_ge_u32 s2, 20")
    A("  s_cbranch_scc1 K1_WH")
    srd(44, 8, 145 * 128)
    A("  s_lshr_b32 s38, s2, 1")
    A("  s_lshl_b32 s40, s38, 4")
    A("  s_mov_b32 s41, 8")
    A("  s_mov_b32 s42, 4")
    A("  s_mov_b32 s43, 1")
    A("  s_cmp_lt_u32 s38, 8")
    A("  s_cbranch_scc1 K1_WGO")
    A("  s_movk_i32 s40, 129")
    A("  s_cmp_eq_u32 s38, 8")
    A("  s_cbranch_scc1 K1_WGO")
    A("  s_movk_i32 s40, 128")
    A("  s_movk_i32 s41, 4096")
    A("  s_movk_i32 s42, 4096")
    A("  s_movk_i32 s43, 4096")
    A("  s_branch K1_WGO")
    A("K1_WH:")
    srd(44, 10, 128 * 128)
    A("  s_sub_u32 s38, s2, 20")
    A("  s_lshr_b32 s38, s38, 1")
    A("  s_lshl_b32 s40, s38, 4")
    A("  s_mov_b32 s41, 8")
    A("  s_mov_b32 s42, 4")
    A("  s_mov_b32 s43, 1")
    A("  s_cmp_lt_u32 s38, 4")
    A("  s_cbranch_scc1 K1_WGO")
    A("  s_mov_b32 s41, 4")
    A("  s_mov_b32 s42, 8")
    A("K1_WGO:")
    A("  v_lshrrev_b32 v60, 5, v0")
    A("  v_mul_lo_u32 v60, v60, s41")
    A("  v_add_u32 v60, s40, v60")
    A("  v_lshlrev_b32 v60, 7, v60")
    A("  v_and_b32 v61, 31, v0")
    A("  s_and_b32 s39, s2, 1")
    A("  s_lshl_b32 s39, s39, 5")
    A("  v_add_u32 v61, s39, v61")
    A("  v_lshl_add_u32 v60, v61, 1, v60")
    for j in range(8):
        A(f"  s_mul_i32 s48, s42, {(j>>2)*128}")
        A(f"  s_mul_i32 s49, s43, {(j&3)*128}")
        A(f"  s_add_u32 s{50+j}, s48, s49")
    for j in range(8):
        A(f"  buffer_load_ushort v{62+j}, v60, s[44:47], s{50+j} offen")
    A("  s_waitcnt vmcnt(0)")
    A("  s_cmp_ge_u32 s2, 20")
    A("  s_cbranch_scc1 K1_NOSC")
    for j in range(8):
        A(f"  v_lshlrev_b32 v{62+j}, 16, v{62+j}")
        A(f"  v_mul_f32 v{62+j}, 0x3c800000, v{62+j}")
        A(f"  v_lshrrev_b32 v{62+j}, 16, v{62+j}")
    A("K1_NOSC:")
    for p in range(4):
        A(f"  v_lshl_or_b32 v{72+p}, v{63+2*p}, 16, v{62+2*p}")
    A("  v_lshlrev_b32 v61, 4, v0")
    A("  s_lshl_b32 s48, s2, 10")
    A(f"  s_add_u32 s48, s48, {WS_WF}")
    A("  buffer_store_dwordx4 v[72:75], v61, s[24:27], s48 offen")
    A("K1_END:")
    A("  s_endpgm")

V_HH16, V_HB, V_OHW, V_OHR, V_UR, V_OHA = 1, 2, 3, 4, 5, 6
ENT = [7, 8]
DF = [[252, 253, 254], [9, 10, 11]]
V_W9 = 12
V_WX0, V_WX1 = 13, 15
V_W = 16
V_W8 = 80
V_PA = 88
V_D2 = 92
V_ZERO = 93
V_ACC = 96
V_D1 = 128
V_MP = 160
V_T = 176
V_H = 192
HS = [208, 228]
EA = [224, 244]
V_PS, V_PD = 248, 250
V_LA = 255
V_TMP = 248
V_E, V_HALF = 246, 247

S_H, S_POS, S_EA, S_WS, S_OUT, S_WXS = 16, 20, 24, 28, 32, 36
S_NB, S_T, S_WIN, S_N, S_NT, S_TC = 40, 41, 42, 43, 44, 45
S_NL2E, S_ONE2 = 46, 48
S_BASE, S_PERM, S_G = 50, 51, 52
S_HIM, S_B1M, S_B0M = 54, 56, 58
S_MASKHI = 60
S_UM = 68
S_C128, S_C144, S_C80, S_P4S, S_P4D = 88, 89, 90, 91, 92

def silu_pairs(base, npairs, post):
    for i0 in range(0, npairs, 2):
        idx = [i0, i0 + 1]
        tp = {i0: V_TMP, i0 + 1: V_TMP + 4}
        for i in idx:
            r = base + 2 * i
            A(f"  v_cvt_pk_bf16_f32 v{tp[i]}, v{r}, v{r+1}")
        for i in idx:
            r = base + 2 * i
            A(f"  v_lshlrev_b32 v{r}, 16, v{tp[i]}")
            A(f"  v_and_b32 v{r+1}, s{S_MASKHI}, v{tp[i]}")
        for i in idx:
            r = base + 2 * i
            A(f"  v_pk_mul_f32 {vr(tp[i]+2,2)}, {vr(r,2)}, {sr(S_NL2E,2)}")
        for i in idx:
            A(f"  v_exp_f32 v{tp[i]+2}, v{tp[i]+2}")
            A(f"  v_exp_f32 v{tp[i]+3}, v{tp[i]+3}")
        A("  s_nop 0")
        for i in idx:
            A(f"  v_pk_add_f32 {vr(tp[i]+2,2)}, {vr(tp[i]+2,2)}, {sr(S_ONE2,2)}")
        for i in idx:
            A(f"  v_rcp_f32 v{tp[i]+2}, v{tp[i]+2}")
            A(f"  v_rcp_f32 v{tp[i]+3}, v{tp[i]+3}")
        A("  s_nop 0")
        for i in idx:
            r = base + 2 * i
            A(f"  v_pk_mul_f32 {vr(r,2)}, {vr(r,2)}, {vr(tp[i]+2,2)}")
        for i in idx:
            post(i, base + 2 * i)

def silu_from_packed(p, r, t):
    L = []
    L.append(f"  v_lshlrev_b32 v{r}, 16, v{p}")
    L.append(f"  v_and_b32 v{r+1}, s{S_MASKHI}, v{p}")
    L.append(f"  v_mul_f32 v{r}, 0x42800000, v{r}")
    L.append(f"  v_mul_f32 v{r+1}, 0x42800000, v{r+1}")
    L.append(f"  v_mul_f32 v{t}, s{S_NL2E}, v{r}")
    L.append(f"  v_mul_f32 v{t+1}, s{S_NL2E}, v{r+1}")
    L.append(f"  v_exp_f32 v{t}, v{t}")
    L.append(f"  v_exp_f32 v{t+1}, v{t+1}")
    L.append("  s_nop 0")
    L.append(f"  v_add_f32 v{t}, 1.0, v{t}")
    L.append(f"  v_add_f32 v{t+1}, 1.0, v{t+1}")
    L.append(f"  v_rcp_f32 v{t}, v{t}")
    L.append(f"  v_rcp_f32 v{t+1}, v{t+1}")
    L.append("  s_nop 0")
    L.append(f"  v_mul_f32 v{r}, v{r}, v{t}")
    L.append(f"  v_mul_f32 v{r+1}, v{r+1}, v{t+1}")
    L.append(f"  v_cvt_pk_bf16_f32 v{t}, v{r}, v{r+1}")
    L.append(f"  v_lshlrev_b32 v{r}, 16, v{t}")
    L.append(f"  v_and_b32 v{r+1}, s{S_MASKHI}, v{t}")
    return L

SLOW = []

def front_a(nt, chk):
    D = V_D1 + 16 * nt
    P = V_MP + 8 * nt
    L = []
    for i in range(8):
        L.append(f"  v_cvt_pk_bf16_f32 v{P+i}, v{D+2*i}, v{D+2*i+1}")
    L.append(f"  v_or3_b32 v{chk}, v{P}, v{P+1}, v{P+2}")
    L.append(f"  v_or3_b32 v{chk}, v{chk}, v{P+3}, v{P+4}")
    L.append(f"  v_or3_b32 v{chk}, v{chk}, v{P+5}, v{P+6}")
    L.append(f"  v_or_b32 v{chk}, v{chk}, v{P+7}")
    L.append(f"  v_and_b32 v{chk}, 0x40004000, v{chk}")
    L.append(f"  v_cmp_ne_u32 vcc, 0, v{chk}")
    return L

def lut_pair(nt, i):
    D = V_D1 + 16 * nt
    P = V_MP + 8 * nt
    return [f"  v_add_u32_sdwa v{D+2*i}, v{P+i}, v{P+i} dst_sel:DWORD dst_unused:UNUSED_PAD src0_sel:WORD_0 src1_sel:WORD_0",
            f"  v_add_u32_sdwa v{D+2*i+1}, v{P+i}, v{P+i} dst_sel:DWORD dst_unused:UNUSED_PAD src0_sel:WORD_1 src1_sel:WORD_1",
            f"  ds_read_u16_d16_hi v{D+2*i}, v{D+2*i}",
            f"  ds_read_u16_d16_hi v{D+2*i+1}, v{D+2*i+1}"]

def slow_branch(nt, tag, tmp):
    D = V_D1 + 16 * nt
    P = V_MP + 8 * nt
    S = [f"K2_SLOW{tag}:", "  s_waitcnt lgkmcnt(0)"]
    for i in range(8):
        S += silu_from_packed(P + i, D + 2 * i, tmp)
    S.append("  s_nop 1")
    S.append(f"  s_branch K2_BACK{tag}")
    SLOW.extend(S)
    return [f"  s_cbranch_vccnz K2_SLOW{tag}", f"K2_BACK{tag}:"]

def back(nt, half):
    D = V_D1 + 16 * nt
    P = V_MP + 8 * nt
    L = []
    for i in range(4 * half, 4 * half + 4):
        for k in range(2):
            r = 2 * i + k
            if nt == 0:
                L.append(f"  v_mul_f32 v{V_T+r}, v{D+r}, v{V_WX0}")
            else:
                L.append(f"  v_fmac_f32 v{V_T+r}, v{D+r}, v{V_WX1}")
        L.append(f"  v_perm_b32 v{P+i}, v{D+2*i+1}, v{D+2*i}, s{S_PERM}")
    return L

def pos_math(df):
    t = V_T
    L = []
    L.append(f"  v_lshlrev_b32 v{t}, 16, v{V_PS}")
    L.append(f"  v_and_b32 v{t+1}, s{S_MASKHI}, v{V_PS}")
    L.append(f"  v_lshlrev_b32 v{t+2}, 16, v{V_PS+1}")
    L.append(f"  v_lshlrev_b32 v{t+3}, 16, v{V_PD}")
    L.append(f"  v_and_b32 v{t+4}, s{S_MASKHI}, v{V_PD}")
    L.append(f"  v_lshlrev_b32 v{t+5}, 16, v{V_PD+1}")
    for c in range(3):
        L.append(f"  v_sub_f32 v{t+c}, v{t+3+c}, v{t+c}")
    L.append(f"  v_cvt_pk_bf16_f32 v{t+3}, v{t}, v{t+1}")
    L.append(f"  v_cvt_pk_bf16_f32 v{t+4}, v{t+2}, v{t+2}")
    L.append(f"  v_lshlrev_b32 v{df[0]}, 16, v{t+3}")
    L.append(f"  v_and_b32 v{df[1]}, s{S_MASKHI}, v{t+3}")
    L.append(f"  v_lshlrev_b32 v{df[2]}, 16, v{t+4}")
    for c in range(3):
        L.append(f"  v_mul_f32 v{t+c}, v{df[c]}, v{df[c]}")
    L.append(f"  v_cvt_pk_bf16_f32 v{t+3}, v{t}, v{t+1}")
    L.append(f"  v_cvt_pk_bf16_f32 v{t+4}, v{t+2}, v{t+2}")
    L.append(f"  v_lshlrev_b32 v{t}, 16, v{t+3}")
    L.append(f"  v_and_b32 v{t+1}, s{S_MASKHI}, v{t+3}")
    L.append(f"  v_lshlrev_b32 v{t+2}, 16, v{t+4}")
    L.append(f"  v_add_f32 v{t}, v{t}, v{t+1}")
    L.append(f"  v_add_f32 v{t}, v{t}, v{t+2}")
    L.append(f"  v_cvt_pk_bf16_f32 v{t}, v{t}, v{V_ZERO}")
    L.append(f"  v_cndmask_b32_e64 v{V_D2}, v{t}, v{V_ZERO}, {sr(S_HIM,2)}")
    return L

def pos_loads(ent):
    t = V_T + 6
    return [f"  v_mad_u32_u16 v{t}, v{ent}, 8, 0",
            f"  v_mad_u32_u16 v{t+1}, v{ent}, 8, 0 op_sel:[1,0,0,0]",
            f"  buffer_load_dwordx2 {vr(V_PS,2)}, v{t}, {sr(S_WS,4)}, s{S_P4S} offen",
            f"  buffer_load_dwordx2 {vr(V_PD,2)}, v{t+1}, {sr(S_WS,4)}, s{S_P4D} offen"]

def gather_loads(b):
    L = [f"  v_mad_u32_u16 v{HS[b]+12}, v{ENT[b]}, s{S_C128}, v{V_HH16}",
         f"  v_lshl_add_u32 v{EA[b]}, v{EA[b]}, 5, v{V_HH16}"]
    for s in range(4):
        L.append(f"  buffer_load_dwordx4 {vr(HS[b]+4*s,4)}, v{HS[b]+12}, {sr(S_H,4)}, 0 offen offset:{32*s}")
    L.append(f"  buffer_load_dwordx4 {vr(EA[b],4)}, v{EA[b]}, {sr(S_EA,4)}, 0 offen")
    return L

def h_reads(ent):
    L = [f"  v_mad_u32_u16 v{V_H+12}, v{ent}, s{S_C144}, v{V_HB} op_sel:[1,0,0,0]"]
    for s in range(4):
        L.append(f"  ds_read_b128 {vr(V_H+4*s,4)}, v{V_H+12} offset:{L_HROW+32*s}")
    return L

def oh_set(ent, tmp):
    return [f"  v_mad_u32_u16 v{V_OHA}, v{ent}, s{S_C80}, v{V_OHW} op_sel:[1,0,0,0]",
            f"  v_mov_b32 v{tmp}, 0x3f80",
            f"  ds_write_b16 v{V_OHA}, v{tmp}"]

def mchain(b, nt, order):
    L = []
    d = vr(V_D1 + 16 * nt, 16)
    for q, k in enumerate(order):
        if k[0] == "H":
            a, w = V_H + 4 * int(k[1]), V_W + 4 * (2 * int(k[1]) + nt)
        elif k[0] == "S":
            a, w = HS[b] + 4 * int(k[1]), V_W + 4 * (2 * (4 + int(k[1])) + nt)
        elif k == "E":
            a, w = EA[b], V_W8 + 4 * nt
        else:
            a, w = V_D2, V_W9 + 2 * nt
        c = "0" if q == 0 else d
        L.append(f"  v_mfma_f32_32x32x16_bf16 {d}, {vr(a,4)}, {vr(w,4)}, {c}")
    return L

def u_mfmas():
    L = []
    for q in range(4):
        L.append(f"  v_mfma_f32_4x4x4_16b_bf16 {vr(V_PA,4)}, {vr(V_T+8+2*q,2)}, {vr(V_D1+16+2*q,2)}, {vr(V_PA,4)}")
    return L

def weave(v, m, pos):
    assert len(m) == len(pos)
    L = []
    j = 0
    for i in range(len(v) + 1):
        while j < len(m) and pos[j] == i:
            L.append(m[j])
            j += 1
        if i < len(v):
            L.append(v[i])
    assert j == len(m)
    return L

def phase_x(b, tag):
    M = mchain(b, 1, ["D", "H0", "H1", "H2", "H3", "E", "S0", "S1", "S2", "S3"])
    U = u_mfmas()
    L = [f"  ds_read_b32 v{ENT[b]}, v{V_LA} offset:4"]
    L += front_a(0, V_T)
    L.append("  s_waitcnt lgkmcnt(1)")
    for i in range(8):
        if i < 4:
            L.append(U[i])
        elif i in (4, 6):
            L.append(M[(i - 4) // 2])
        L += lut_pair(0, i)
    L.append(M[2])
    L += slow_branch(0, tag, V_T)
    L.append("  s_waitcnt vmcnt(5)")
    L += weave(pos_math(DF[b ^ 1]), M[3:6], [6, 14, 22])
    L.append("  s_waitcnt lgkmcnt(15)")
    L += pos_loads(ENT[b])
    L.append(M[6])
    L.append("  s_waitcnt lgkmcnt(8)")
    L += weave(back(0, 0), M[7:8], [6])
    L.append("  s_waitcnt lgkmcnt(0)")
    L += weave(back(0, 1), M[8:10], [1, 8])
    for l in L:
        A(l)

def phase_y(b, tag):
    M = mchain(b ^ 1, 0, ["S0", "S1", "S2", "S3", "E", "D", "H0", "H1", "H2", "H3"])
    L = h_reads(ENT[b ^ 1])
    L.append(f"  ds_read_b32 v{EA[b]}, v{V_LA}")
    L.append(f"  v_add_u32 v{V_LA}, 256, v{V_LA}")
    L += front_a(1, HS[b])
    L.append("  s_waitcnt vmcnt(2)")
    for i in range(8):
        if i % 2 == 0:
            L.append(M[i // 2])
        L += lut_pair(1, i)
    L.append(M[4])
    L += slow_branch(1, tag, HS[b])
    L.append("  s_waitcnt lgkmcnt(15)")
    L += gather_loads(b)
    L.append(M[5])
    L.append("  s_waitcnt lgkmcnt(8)")
    L += weave(back(1, 0), M[6:7], [8])
    L.append("  s_waitcnt lgkmcnt(0)")
    L += weave(back(1, 1), M[7:9], [4, 12])
    OH = V_D1 + 16
    L.append(f"  ds_read_b128 {vr(OH,4)}, v{V_OHR}")
    L.append(f"  ds_read_b128 {vr(OH+4,4)}, v{V_OHR} offset:32")
    L.append(f"  ds_write_b16 v{V_OHA}, v{V_ZERO}")
    L += oh_set(ENT[b ^ 1], OH + 8)
    L.append(M[9])
    t = V_T
    for r in range(8):
        L.append(f"  v_permlane16_swap_b32 v{t+r}, v{t+r+8}")
    for r in range(8):
        L.append(f"  v_add_f32 v{t+r}, v{t+r}, v{t+r+8}")
    G = []
    for tt in range(2):
        for mt in range(2):
            d = vr(V_ACC + 16 * mt, 16)
            G.append(f"  v_mfma_f32_32x32x16_bf16 {d}, {vr(V_MP+8*mt+4*tt,4)}, {vr(OH+4*tt,4)}, {d}")
    L.append("  s_waitcnt lgkmcnt(2)")
    L.append(G[0])
    for r in range(4):
        L.append(f"  v_add_f32_dpp v{t+r}, v{t+r}, v{t+r} row_mirror row_mask:0xf bank_mask:0x3")
    for r in range(4):
        L.append(f"  v_add_f32_dpp v{t+r}, v{t+r+4}, v{t+r+4} row_mirror row_mask:0xf bank_mask:0xc")
    L.append(G[1])
    for r in range(2):
        L.append(f"  v_cndmask_b32_e64 v{t+4+r}, v{t+r}, v{t+r+2}, {sr(S_B1M,2)}")
        L.append(f"  v_cndmask_b32_e64 v{t+6+r}, v{t+r+2}, v{t+r}, {sr(S_B1M,2)}")
    L.append(G[2])
    for r in range(2):
        L.append(f"  v_add_f32_dpp v{t+r}, v{t+6+r}, v{t+4+r} quad_perm:[2,3,0,1] row_mask:0xf bank_mask:0xf")
    L.append(f"  v_cndmask_b32_e64 v{t+4}, v{t}, v{t+1}, {sr(S_B0M,2)}")
    L.append(f"  v_cndmask_b32_e64 v{t+6}, v{t+1}, v{t}, {sr(S_B0M,2)}")
    L.append(G[3])
    L.append(f"  v_add_f32_dpp v{t}, v{t+6}, v{t+4} quad_perm:[1,0,3,2] row_mask:0xf bank_mask:0xf")
    L.append(f"  v_add_f32_dpp v{t+1}, v{t}, v{t} row_shl:4 row_mask:0x3 bank_mask:0x5")
    L.append(f"  v_add_f32_dpp v{t+1}, v{t}, v{t} row_shr:4 row_mask:0xc bank_mask:0xa")
    L.append(f"  v_cvt_pk_bf16_f32 v{t+1}, v{t+1}, v{t+1}")
    L.append(f"  v_lshlrev_b32 v{t+1}, 16, v{t+1}")
    for c in range(3):
        L.append(f"  v_mul_f32 v{t+2+c}, v{DF[b][c]}, v{t+1}")
    L.append(f"  v_cvt_pk_bf16_f32 v{t+5}, v{t+2}, v{t+3}")
    L.append(f"  v_cvt_pk_bf16_f32 v{t+6}, v{t+4}, v{t+4}")
    L.append(f"  s_mov_b64 exec, {sr(S_UM,2)}")
    L.append(f"  ds_write_b16 v{V_OHW}, v{t+5} offset:{L_U-L_OH}")
    L.append(f"  ds_write_b16_d16_hi v{V_OHW}, v{t+5} offset:{L_U-L_OH+64}")
    L.append(f"  ds_write_b16 v{V_OHW}, v{t+6} offset:{L_U-L_OH+128}")
    L.append("  s_mov_b64 exec, -1")
    L.append(f"  ds_read_b128 {vr(t+8,4)}, v{V_UR}")
    L.append(f"  ds_read_b128 {vr(t+12,4)}, v{V_UR} offset:32")
    for l in L:
        A(l)

def table_loads():
    A("  v_lshlrev_b32 v249, 5, v0")
    A(f"  s_lshr_b32 s61, s{S_G}, 3")
    A("  s_lshl_b32 s61, s61, 13")
    A(f"  s_and_b32 s62, s{S_G}, 7")
    A("  s_lshl_b32 s62, s62, 2")
    A("  s_add_u32 s62, s62, s61")
    A(f"  s_add_u32 s62, s62, {WS_TAB}")
    A("  s_add_u32 s63, s62, 4096")
    for j in range(4):
        A(f"  buffer_load_dword v{128+j}, v249, {sr(S_WS,4)}, s{62+(j>>1)} offen offset:{2048*(j&1)}")

def table_scan():
    for j in range(4):
        A(f"  v_lshrrev_b32 v{152+j}, 16, v{128+j}")
        A(f"  v_and_b32 v{160+j}, 0xffff, v{128+j}")
    A(f"  v_mul_u32_u24 v249, {CH}, v0")
    for j in range(4):
        A(f"  v_add_u32 v{160+j}, v{160+j}, v249")
        if j:
            A(f"  v_add_u32 v{160+j}, {64*CH*j}, v{160+j}")
    A("  v_add_u32 v164, v152, v153")
    A("  v_add_u32 v165, v154, v155")
    A("  v_add_u32 v164, v164, v165")
    A("  v_mov_b32 v165, v164")
    wave_scan(165)
    A(f"  v_readlane_b32 s{S_T}, v165, 63")
    A("  v_sub_u32 v156, v165, v164")
    A("  v_add_u32 v157, v156, v152")
    A("  v_add_u32 v158, v157, v153")
    A("  v_add_u32 v159, v158, v154")

def k_main():
    name = "gather_scatter__cheap_equivariant_egnn__graph_kernel"
    A(f".globl {name}")
    A(".p2align 8")
    A(f".type {name},@function")
    A(f"{name}:")
    A("  s_cmp_ge_u32 s2, 256")
    A("  s_cbranch_scc1 K2_END")
    A("  s_and_b32 s3, s2, 7")
    A("  s_lshl_b32 s3, s3, 5")
    A("  s_lshr_b32 s61, s2, 3")
    A("  s_add_u32 s3, s3, s61")
    A(f"  s_cmp_ge_u32 s3, {NWG2}")
    A("  s_cbranch_scc1 K2_END")
    stamp(0, True)
    stamp(1)
    A("  s_load_dwordx4 s[4:7], s[0:1], 0")
    A("  s_load_dwordx2 s[8:9], s[0:1], 16")
    A("  s_load_dwordx2 s[10:11], s[0:1], 48")
    A("  s_load_dwordx2 s[12:13], s[0:1], 64")
    A("  s_load_dwordx2 s[14:15], s[0:1], 80")
    A("  v_lshrrev_b32 v248, 6, v0")
    A("  v_lshlrev_b32 v255, 4, v0")
    A("  v_readfirstlane_b32 s61, v248")
    A("  v_and_b32 v0, 63, v0")
    A("  s_lshl_b32 s3, s3, 3")
    A(f"  s_add_u32 s{S_G}, s3, s61")
    A(f"  s_mul_i32 s{S_NB}, s{S_G}, {GS}")
    A(f"  s_mul_i32 s{S_BASE}, s61, {WA}")
    A(f"  s_add_u32 s{S_BASE}, s{S_BASE}, 32768")
    A("  s_cmp_lt_u32 s61, 3")
    A("  s_cbranch_scc1 K2_B0")
    A(f"  s_add_u32 s{S_BASE}, s{S_BASE}, {65536 - 3*WA}")
    A("K2_B0:")
    A(f"  s_mov_b32 s{S_NL2E}, 0xbfb8aa3b")
    A(f"  s_mov_b32 s{S_NL2E+1}, 0xbfb8aa3b")
    A(f"  s_mov_b32 s{S_ONE2}, 1.0")
    A(f"  s_mov_b32 s{S_ONE2+1}, 1.0")
    A(f"  s_mov_b32 s{S_PERM}, 0x07060302")
    A(f"  s_mov_b32 s{S_HIM}, 0")
    A(f"  s_mov_b32 s{S_HIM+1}, -1")
    A(f"  s_mov_b32 s{S_B1M}, 0xcccccccc")
    A(f"  s_mov_b32 s{S_B1M+1}, 0xcccccccc")
    A(f"  s_mov_b32 s{S_B0M}, 0xaaaaaaaa")
    A(f"  s_mov_b32 s{S_B0M+1}, 0xaaaaaaaa")
    A(f"  s_mov_b32 s{S_MASKHI}, 0xffff0000")
    A(f"  s_mov_b32 s{S_UM}, 0x0f0f0f0f")
    A(f"  s_mov_b32 s{S_UM+1}, 0xf0f0f0f0")
    A(f"  s_movk_i32 s{S_C128}, 128")
    A(f"  s_movk_i32 s{S_C144}, {HSTR}")
    A(f"  s_movk_i32 s{S_C80}, {OSTR}")
    A(f"  s_mov_b32 s{S_P4S}, {WS_POS4}")
    A(f"  s_lshl_b32 s{S_P4D}, s{S_NB}, 3")
    A(f"  s_add_u32 s{S_P4D}, s{S_P4D}, {WS_POS4}")
    A("  s_waitcnt lgkmcnt(0)")
    srd(S_WS, 14, WS_SIZE)
    table_loads()
    srd(S_H, 4, N * 128)
    srd(S_POS, 6, N * 6)
    srd(S_EA, 8, E * 32)
    srd(S_OUT, 12, N * 128 + N * 6)
    srd(S_WXS, 10, 128)
    A(f"  v_and_b32 v{V_E}, 31, v0")
    A(f"  v_lshrrev_b32 v{V_HALF}, 5, v0")
    A("  v_lshlrev_b32 v250, 4, v0")
    A(f"  s_lshl_b32 s61, s{S_NB}, 7")
    for i in range(4):
        A(f"  buffer_load_dwordx4 {vr(132+4*i,4)}, v250, {sr(S_H,4)}, s61 offen offset:{1024*i}")
    A(f"  v_lshlrev_b32 v251, 1, v{V_E}")
    A(f"  buffer_load_ushort v{V_WX0}, v251, {sr(S_WXS,4)}, 0 offen")
    A(f"  buffer_load_ushort v{V_WX1}, v251, {sr(S_WXS,4)}, 0 offen offset:64")
    A("  s_barrier")
    A(f"  s_mov_b32 s61, {WS_LUT}")
    for i in range(8):
        A(f"  buffer_load_dwordx4 {vr(96+4*i,4)}, v255, {sr(S_WS,4)}, s61 offen")
        if i < 7:
            A("  s_add_u32 s61, s61, 8192")
    e = V_E
    A(f"  v_lshlrev_b32 v{V_HH16}, 4, v{V_HALF}")
    A(f"  v_add_u32 v{V_HB}, s{S_BASE}, v{V_HH16}")
    A(f"  v_lshrrev_b32 v248, 4, v{e}")
    A(f"  v_lshlrev_b32 v{V_OHW}, 5, v248")
    A(f"  v_bfe_u32 v248, v{e}, 2, 1")
    A(f"  v_lshl_add_u32 v{V_OHW}, v248, 4, v{V_OHW}")
    A(f"  v_bfe_u32 v248, v{e}, 3, 1")
    A(f"  v_lshl_add_u32 v{V_OHW}, v248, 3, v{V_OHW}")
    A(f"  v_and_b32 v248, 3, v{e}")
    A(f"  v_lshl_add_u32 v{V_OHW}, v248, 1, v{V_OHW}")
    A(f"  v_add_u32 v{V_OHW}, {L_OH}, v{V_OHW}")
    A(f"  v_add_u32 v{V_OHW}, s{S_BASE}, v{V_OHW}")
    A(f"  v_min_u32 v{V_OHR}, 25, v{e}")
    A(f"  v_mul_u32_u24 v{V_OHR}, {OSTR}, v{V_OHR}")
    A(f"  v_add_u32 v{V_OHR}, v{V_OHR}, v{V_HB}")
    A(f"  v_add_u32 v{V_OHR}, {L_OH}, v{V_OHR}")
    A(f"  v_lshl_add_u32 v{V_UR}, v248, 6, v{V_HB}")
    A(f"  v_add_u32 v{V_UR}, {L_U}, v{V_UR}")
    for i in range(1, 4):
        A(f"  v_mov_b32 v{V_D2+i}, 0")
    for i in range(4):
        A(f"  v_mov_b32 v{148+i}, 0")
    A(f"  v_add_u32 v252, s{S_BASE}, v250")
    for i in range(2):
        A(f"  ds_write_b128 v252, v[148:151] offset:{L_OH+1024*i}")
    A(f"  v_cmp_gt_u32 vcc, 17, v0")
    A("  s_and_saveexec_b64 s[66:67], vcc")
    A(f"  ds_write_b128 v252, v[148:151] offset:{L_OH+2048}")
    A("  s_mov_b64 exec, s[66:67]")
    A(f"  v_cmp_gt_u32 vcc, 8, v0")
    A("  s_and_saveexec_b64 s[66:67], vcc")
    A(f"  ds_write_b128 v252, v[148:151] offset:{L_HROW+25*HSTR}")
    A("  s_mov_b64 exec, s[66:67]")
    A("  s_waitcnt vmcnt(14)")
    table_scan()
    stamp(2)
    A("  v_lshrrev_b32 v249, 3, v0")
    A(f"  v_mul_u32_u24 v249, {HSTR}, v249")
    A("  v_and_b32 v251, 7, v0")
    A("  v_lshl_add_u32 v249, v251, 4, v249")
    A(f"  v_add_u32 v249, s{S_BASE}, v249")
    A("  s_waitcnt vmcnt(10)")
    for i in range(3):
        A(f"  ds_write_b128 v249, {vr(132+4*i,4)} offset:{L_HROW+8*HSTR*i}")
    A(f"  v_cmp_gt_u32 vcc, 8, v0")
    A("  s_and_saveexec_b64 s[66:67], vcc")
    A(f"  ds_write_b128 v249, {vr(144,4)} offset:{L_HROW+8*HSTR*3}")
    A("  s_mov_b64 exec, s[66:67]")
    A("  s_waitcnt vmcnt(8)")
    A(f"  v_lshlrev_b32 v{V_WX0}, 16, v{V_WX0}")
    A(f"  v_lshlrev_b32 v{V_WX1}, 16, v{V_WX1}")
    A(f"  s_mov_b32 s{S_WIN}, 0")
    A("  s_branch K2_R0")
    A("K2_ROUND:")
    table_loads()
    A("  s_waitcnt vmcnt(0)")
    table_scan()
    A("K2_R0:")
    A(f"  s_sub_u32 s{S_N}, s{S_T}, s{S_WIN}")
    A(f"  s_min_u32 s{S_N}, s{S_N}, {CAP}")
    A(f"  s_add_u32 s61, s{S_WIN}, {CAP}")
    for j in range(4):
        A(f"  s_cmp_lg_u32 s{S_WIN}, 0")
        A(f"  s_cbranch_scc1 K2_NOW{j}")
        A(f"  s_mov_b32 s62, {WS_WF + 5120*j}")
        for q in range(5):
            f = 5 * j + q
            if q == 4:
                A("  s_add_u32 s62, s62, 4096")
            if f < 18:
                dstr = V_W + 4 * f if f < 16 else V_W8 + 4 * (f - 16)
                A(f"  buffer_load_dwordx4 {vr(dstr,4)}, v250, {sr(S_WS,4)}, s62 offen offset:{1024*(q%4)}")
            else:
                A(f"  buffer_load_dword v{V_W9+2*(f-18)}, v250, {sr(S_WS,4)}, s62 offen offset:{1024*(q%4)}")
        A(f"K2_NOW{j}:")
        A(f"  v_max_u32 v164, s{S_WIN}, v{156+j}")
        A(f"  v_add_u32 v165, v{156+j}, v{152+j}")
        A(f"  v_min_u32 v165, s61, v165")
        A(f"  v_sub_u32 v166, v164, v{156+j}")
        A(f"  v_add_u32 v166, v166, v{160+j}")
        A(f"  v_subrev_u32 v167, s{S_WIN}, v164")
        A(f"  v_lshl_add_u32 v167, v167, 3, s{S_BASE}")
        A(f"K2_EXP{j}:")
        A("  v_cmp_lt_u32 vcc, v164, v165")
        A(f"  s_cbranch_vccz K2_EXPD{j}")
        A("  s_mov_b64 exec, vcc")
        A(f"  ds_write_b32 v167, v166 offset:{L_LIST}")
        A("  v_add_u32 v164, 1, v164")
        A("  v_add_u32 v166, 1, v166")
        A("  v_add_u32 v167, 8, v167")
        A(f"  s_branch K2_EXP{j}")
        A(f"K2_EXPD{j}:")
        A("  s_mov_b64 exec, -1")
    stamp(3)
    A(f"  v_lshl_add_u32 v249, v0, 3, s{S_BASE}")
    for i in range(CAP // 64):
        A(f"  ds_read_b32 v{164+i}, v249 offset:{L_LIST+512*i}")
    A("  s_waitcnt lgkmcnt(0)")
    for i in range(CAP // 64):
        A(f"  v_lshlrev_b32 v{164+i}, 3, v{164+i}")
        A(f"  buffer_load_dwordx2 {vr(176+2*i,2)}, v{164+i}, {sr(S_WS,4)}, 0 offen")
    A(f"  s_cmp_lg_u32 s{S_WIN}, 0")
    A("  s_cbranch_scc1 K2_R1")
    A("  s_waitcnt vmcnt(28)")
    A("  v_add_u32 v254, 0x10000, v255")
    for i in range(8):
        A(f"  ds_write_b128 v{255 if i < 4 else 254}, {vr(96+4*i,4)} offset:{8192*(i&3)}")
    A("  s_waitcnt lgkmcnt(0)")
    for i in range(32):
        A(f"  v_mov_b32 v{V_ACC+i}, 0")
    for i in range(4):
        A(f"  v_mov_b32 v{V_PA+i}, 0")
    A("  s_barrier")
    if os.environ.get("EXP_HALF"):
        A(f"  s_and_b32 s61, s{S_G}, 7")
        A("  s_cmp_ge_u32 s61, 4")
        A("  s_cbranch_scc1 K2_END")
    A("K2_R1:")
    for i in range(CAP // 64):
        A(f"  s_waitcnt vmcnt({CAP//64-1-i})")
        if int(os.environ.get("EXP_NOMEM", "0")) & 1:
            A(f"  v_and_b32 v{176+2*i}, 1023, v{176+2*i}")
        if int(os.environ.get("EXP_NOMEM", "0")) & 2:
            A(f"  v_and_b32 v{177+2*i}, 0xffff03ff, v{177+2*i}")
        A(f"  ds_write_b64 v249, {vr(176+2*i,2)} offset:{L_LIST+512*i}")
    A(f"  s_cmp_eq_u32 s{S_T}, 0")
    A("  s_cbranch_scc1 K2_EPI")
    A(f"  s_lshl_b32 s61, s{S_N}, 3")
    A("  v_add_u32 v249, s61, v249")
    A("  v_mov_b32 v164, 0")
    A(f"  v_mov_b32 v165, {GS << 16}")
    A(f"  ds_write_b64 v249, v[164:165] offset:{L_LIST}")
    A("  s_mov_b32 exec_hi, 0")
    A(f"  ds_write_b64 v249, v[164:165] offset:{L_LIST+512}")
    A("  s_mov_b32 exec_hi, -1")
    A(f"  s_add_u32 s{S_NT}, s{S_N}, 31")
    A(f"  s_lshr_b32 s{S_NT}, s{S_NT}, 5")
    A(f"  s_mov_b32 s{S_TC}, 0")
    stamp(4)
    with seg() as PRO:
        A(f"  v_and_b32 v{V_LA}, 31, v0")
        A(f"  v_lshl_add_u32 v{V_LA}, v{V_LA}, 3, s{S_BASE}")
        A(f"  ds_read_b32 v{ENT[0]}, v{V_LA} offset:4")
        A(f"  ds_read_b32 v{EA[0]}, v{V_LA}")
        A(f"  ds_read_b32 v{ENT[1]}, v{V_LA} offset:260")
        A(f"  ds_read_b32 v{EA[1]}, v{V_LA} offset:256")
        A(f"  v_add_u32 v{V_LA}, 512, v{V_LA}")
        for i in range(8):
            A(f"  v_mov_b32 v{V_T+8+i}, 0")
            A(f"  v_mov_b32 v{V_D1+16+i}, 0")
        A("  s_waitcnt lgkmcnt(2)")
        for l in pos_loads(ENT[0]) + gather_loads(0) + h_reads(ENT[0]) + oh_set(ENT[0], V_T):
            A(l)
        A("  s_waitcnt vmcnt(5)")
        for l in pos_math(DF[0]):
            A(l)
        A("  s_waitcnt lgkmcnt(5)")
        for l in pos_loads(ENT[1]) + gather_loads(1):
            A(l)
        A("  s_waitcnt vmcnt(7) lgkmcnt(0)")
        for l in mchain(0, 0, ["S0", "S1", "S2", "S3", "E", "D", "H0", "H1", "H2", "H3"]):
            A(l)
        A("  s_nop 7")
        A("  s_nop 3")
    with seg() as X0:
        phase_x(0, "0a")
    with seg() as Y0:
        phase_y(0, "0b")
        A(f"  s_add_u32 s{S_TC}, s{S_TC}, 1")
        A(f"  s_cmp_ge_u32 s{S_TC}, s{S_NT}")
        A("  s_cbranch_scc1 K2_LOOPD")
    with seg() as X1:
        phase_x(1, "1a")
    with seg() as Y1:
        phase_y(1, "1b")
        A(f"  s_add_u32 s{S_TC}, s{S_TC}, 1")
        A(f"  s_cmp_lt_u32 s{S_TC}, s{S_NT}")
        A("  s_cbranch_scc1 K2_LOOP")
    with seg() as TAIL:
        A("  s_waitcnt lgkmcnt(0)")
        for l in u_mfmas():
            A(l)
        A(f"  ds_write_b16 v{V_OHA}, v{V_ZERO}")
        A("  s_waitcnt vmcnt(0)")
        A(f"  s_add_u32 s{S_WIN}, s{S_WIN}, {CAP}")
        A(f"  s_cmp_lt_u32 s{S_WIN}, s{S_T}")
        A("  s_cbranch_scc1 K2_ROUND")
    with seg() as EPI:
        A("K2_EPI:")
        A("  s_waitcnt vmcnt(0)")
        stamp(5)
        A("  v_lshlrev_b32 v250, 4, v0")
        A(f"  s_mov_b32 s61, {WS_WF+20*1024}")
        for f in range(16):
            if f and f % 4 == 0:
                A("  s_add_u32 s61, s61, 4096")
            A(f"  buffer_load_dwordx4 {vr(V_W+4*f,4)}, v250, {sr(S_WS,4)}, s61 offen offset:{1024*(f%4)}")
        A(f"  v_and_b32 v{e}, 31, v0")
        A(f"  v_min_u32 v249, 25, v{e}")
        A(f"  v_mul_u32_u24 v249, {HSTR}, v249")
        A(f"  v_add_u32 v251, v249, v{V_HB}")
        for s in range(4):
            A(f"  ds_read_b128 {vr(V_T+4*s,4)}, v251 offset:{L_HROW+32*s}")
        A(f"  v_lshrrev_b32 v252, 1, v{V_HH16}")
        A("  v_add_u32 v252, v249, v252")
        A(f"  v_add_u32 v252, s{S_BASE}, v252")
        for ot in range(2):
            for q in range(4):
                A(f"  ds_read_b64 {vr(192+8*ot+2*q,2)}, v252 offset:{L_HROW+64*ot+16*q}")
        for c in range(3):
            A(f"  v_mov_b32 v{218+c}, v{V_PA+c}")
        for c in range(3):
            A(f"  v_permlane32_swap_b32 v{218+c}, v{V_PA+c}")
        for c in range(3):
            A(f"  v_add_f32 v{218+c}, v{218+c}, v{V_PA+c}")
        A(f"  v_add_u32 v230, s{S_NB}, v{e}")
        A("  v_mul_u32_u24 v231, 6, v230")
        for c in range(3):
            A(f"  buffer_load_ushort v{222+c}, v231, {sr(S_POS,4)}, 0 offen offset:{2*c}")
        for mt in range(2):
            for i in range(8):
                A(f"  v_cvt_pk_bf16_f32 v{V_MP+8*mt+i}, v{V_ACC+16*mt+2*i}, v{V_ACC+16*mt+2*i+1}")
        A("  s_waitcnt vmcnt(3) lgkmcnt(0)")
        bops = [vr(V_T + 4 * s, 4) for s in range(4)] + [vr(V_MP + 4 * s, 4) for s in range(4)]
        for ks in range(8):
            for ot in range(2):
                d = vr(V_D1 + 16 * ot, 16)
                c = "0" if ks == 0 else d
                A(f"  v_mfma_f32_32x32x16_bf16 {d}, {vr(V_W+4*(2*ks+ot),4)}, {bops[ks]}, {c}")
        A("  s_nop 7")
        A("  s_nop 7")
        def post2(i, r):
            A(f"  v_cvt_pk_bf16_f32 v{V_T}, v{r}, v{r+1}")
            A(f"  v_lshlrev_b32 v{r}, 16, v{V_T}")
            A(f"  v_and_b32 v{r+1}, s{S_MASKHI}, v{V_T}")
            A(f"  v_lshlrev_b32 v{V_T+2}, 16, v{192+i}")
            A(f"  v_and_b32 v{V_T+3}, s{S_MASKHI}, v{192+i}")
            A(f"  v_pk_add_f32 {vr(r,2)}, {vr(r,2)}, {vr(V_T+2,2)}")
            A(f"  v_cvt_pk_bf16_f32 v{V_MP+i}, v{r}, v{r+1}")
        silu_pairs(V_D1, 16, post2)
        A(f"  v_cmp_gt_u32 vcc, {GS}, v{e}")
        A("  s_and_saveexec_b64 s[66:67], vcc")
        A(f"  v_lshrrev_b32 v252, 1, v{V_HH16}")
        A("  v_lshl_add_u32 v252, v230, 7, v252")
        for ot in range(2):
            for q in range(4):
                A(f"  buffer_store_dwordx2 {vr(V_MP+8*ot+2*q,2)}, v252, {sr(S_OUT,4)}, 0 offen offset:{64*ot+16*q}")
        A("  s_waitcnt vmcnt(8)")
        A(f"  v_cvt_pk_bf16_f32 v226, v218, v219")
        A(f"  v_cvt_pk_bf16_f32 v227, v220, v220")
        A(f"  v_lshlrev_b32 v218, 16, v226")
        A(f"  v_and_b32 v219, s{S_MASKHI}, v226")
        A(f"  v_lshlrev_b32 v220, 16, v227")
        for c in range(3):
            A(f"  v_lshlrev_b32 v{222+c}, 16, v{222+c}")
            A(f"  v_add_f32 v{222+c}, v{222+c}, v{218+c}")
            A(f"  v_cvt_pk_bf16_f32 v{222+c}, v{222+c}, v{222+c}")
        A("  v_cmp_gt_u32 vcc, 32, v0")
        A("  s_and_b64 exec, exec, vcc")
        A(f"  s_mov_b32 s61, {N*128}")
        for c in range(3):
            A(f"  buffer_store_short v{222+c}, v231, {sr(S_OUT,4)}, s61 offen offset:{2*c}")
        if STAMP:
            A("  s_waitcnt vmcnt(0)")
            stamp(6)
            stamp(7, True)
            A("  s_mov_b64 exec, 1")
            for i in range(8):
                A(f"  v_mov_b32 v{16+i}, s{70+2*i}")
            A(f"  v_mov_b32 v24, s{S_T}")
            A("  v_mov_b32 v25, s2")
            A(f"  s_lshl_b32 s61, s{S_G}, 6")
            A("  s_add_u32 s61, s61, 0x1000000")
            A("  v_mov_b32 v30, 0")
            A(f"  buffer_store_dwordx4 v[16:19], v30, {sr(S_WS,4)}, s61 offen")
            A(f"  buffer_store_dwordx4 v[20:23], v30, {sr(S_WS,4)}, s61 offen offset:16")
            A(f"  buffer_store_dwordx2 v[24:25], v30, {sr(S_WS,4)}, s61 offen offset:32")
    traces = [PRO + X0 + Y0 + X1 + Y1 + X0 + Y0 + X1 + Y1, X0 + Y0 + TAIL + EPI, X1 + Y1 + TAIL + EPI]
    while any([pad_trace(t) for t in traces]):
        pass
    emit(PRO)
    A("K2_LOOP:")
    emit(X0); emit(Y0); emit(X1); emit(Y1)
    A("K2_LOOPD:")
    emit(TAIL)
    emit(EPI)
    A("K2_END:")
    A("  s_endpgm")
    for l in SLOW:
        A(l)
    npad = sum(i.pre for i in X0 + Y0)
    nins = sum(1 for i in X0 + Y0 if classify(i.t))
    sys.stderr.write(f"tile instrs {nins}, pad states {npad}: " + ", ".join(f"{i.pre}@{i.t.split()[0]}" for i in X0 + Y0 if i.pre) + "\n")

LDS_MAIN = 163840
A(HEADER.rstrip("\n"))
A(f"; @launch kernel=egnn_sort_kernel grid=({NCH},1,1) block=(1024,1,1) lds=8448")
A(f"; @launch kernel=gather_scatter__cheap_equivariant_egnn__graph_kernel grid=(256,1,1) block=(512,1,1) lds={LDS_MAIN}")
A('.amdgcn_target "amdgcn-amd-amdhsa--gfx950"')
A(".text")
k_sort()
k_main()
A('.section .rodata,"a"')
for nm, nv in (("egnn_sort_kernel", 80), ("gather_scatter__cheap_equivariant_egnn__graph_kernel", 256)):
    A(".p2align 6")
    A(f".amdhsa_kernel {nm}")
    A(f"  .amdhsa_next_free_vgpr {nv}")
    A("  .amdhsa_next_free_sgpr 102")
    A(f"  .amdhsa_accum_offset {nv}")
    A("  .amdhsa_group_segment_fixed_size 0")
    A("  .amdhsa_kernarg_size 88")
    A("  .amdhsa_user_sgpr_count 2")
    A("  .amdhsa_user_sgpr_kernarg_segment_ptr 1")
    A("  .amdhsa_system_sgpr_workgroup_id_x 1")
    A("  .amdhsa_float_denorm_mode_32 3")
    A(".end_amdhsa_kernel")
print("\n".join(render(out)))
```

```python
import sys, os, re

N = 50000
E = 800000
NCH = 256
CH = E // NCH
GS = 25
NG = N // GS
CAP = 512
CHS = 3136
K1_STG = 8448
K1_LDS = K1_STG + CHS * 8

WS_REC = 0
WS_TAB = 0x800000
WS_WF = 0xC00000
WS_LUT = 0xC10000
WS_POS4 = 0xC20000
NWG2 = 250
STAMP = int(os.environ.get("STAMP", "0"))
WS_SIZE = 0x2000000 if STAMP else 0x1000000

L_LIST = 0
L_HROW = (CAP + 96) * 8
HSTR = 144
L_OH = L_HROW + 25 * HSTR + 128
OSTR = 80
L_U = L_OH + 25 * OSTR + 64
WA = L_U + 256
assert L_HROW % 16 == 0 and L_OH % 16 == 0 and L_U % 16 == 0 and 3 * WA <= 32768 and 5 * WA <= 65536


class I:
    __slots__ = ("t", "pre")
    def __init__(s, t):
        s.t = t
        s.pre = 0

out = []
CUR = [out]
def A(s=""):
    CUR[-1].append(I(s))

class seg:
    def __enter__(s):
        s.l = []
        CUR.append(s.l)
        return s.l
    def __exit__(s, *a):
        CUR.pop()

def emit(l):
    CUR[-1].extend(l)

def vr(b, n=1):
    return f"v{b}" if n == 1 else f"v[{b}:{b+n-1}]"
def sr(b, n=1):
    return f"s{b}" if n == 1 else f"s[{b}:{b+n-1}]"

HEADER = open(sys.argv[1]).read() if len(sys.argv) > 1 else ""

def srd(d, b, nbytes):
    A(f"  s_mov_b32 s{d}, s{b}")
    A(f"  s_and_b32 s{d+1}, s{b+1}, 0xffff")
    A(f"  s_mov_b32 s{d+2}, {nbytes}")
    A(f"  s_mov_b32 s{d+3}, 0x00020000")

SSET = os.environ.get("SSET", "A")
def stamp(i, real=False, sset="A"):
    if not STAMP or SSET not in sset:
        return
    A(f"  s_{'memrealtime' if real else 'memtime'} s[{70+2*i}:{71+2*i}]")
    A("  s_waitcnt lgkmcnt(0)")

def kstamp(i):
    if not STAMP or SSET != "K":
        return
    A(f"  s_memrealtime s[{70+2*i}:{71+2*i}]")
    A("  s_waitcnt lgkmcnt(0)")

def kstamp_store():
    if not STAMP or SSET != "K":
        return
    A("  s_waitcnt vmcnt(0)")
    kstamp(7)
    A("  v_lshrrev_b32 v60, 6, v0")
    A("  s_nop 3")
    A("  v_readfirstlane_b32 s86, v60")
    A("  s_nop 3")
    A("  s_mov_b64 exec, 1")
    for i in range(8):
        A(f"  v_mov_b32 v{60+i}, s{70+2*i}")
    A("  s_lshl_b32 s87, s2, 4")
    A("  s_add_u32 s87, s87, s86")
    A("  s_lshl_b32 s87, s87, 5")
    A("  s_add_u32 s87, s87, 0x1000000")
    A("  v_mov_b32 v70, 0")
    A("  buffer_store_dwordx4 v[60:63], v70, s[24:27], s87 offen")
    A("  buffer_store_dwordx4 v[64:67], v70, s[24:27], s87 offen offset:16")
    A("  s_mov_b64 exec, -1")

def wave_scan(v):
    for sh in (1, 2, 4, 8):
        A("  s_nop 1")
        A(f"  v_add_u32_dpp v{v}, v{v}, v{v} row_shr:{sh} row_mask:0xf bank_mask:0xf")
    A("  s_nop 1")
    A(f"  v_add_u32_dpp v{v}, v{v}, v{v} row_bcast:15 row_mask:0xa bank_mask:0xf")
    A("  s_nop 1")
    A(f"  v_add_u32_dpp v{v}, v{v}, v{v} row_bcast:31 row_mask:0xc bank_mask:0xf")
    A("  s_nop 1")

RE_V = re.compile(r"^v(\d+)$|^v\[(\d+):(\d+)\]$")
def regs_of(tok):
    tok = tok.strip().split(" ")[0]
    m = RE_V.match(tok)
    if not m:
        return set()
    if m.group(1) is not None:
        return {int(m.group(1))}
    return set(range(int(m.group(2)), int(m.group(3)) + 1))

def classify(t):
    t = t.split(";")[0].strip()
    if not t or t.endswith(":") or t.startswith("."):
        return None
    p = t.split(None, 1)
    mn = p[0]
    ops = [o.strip() for o in p[1].split(",")] if len(p) > 1 else []
    R = [regs_of(o) for o in ops]
    allr = set().union(*R) if R else set()
    d = dict(mn=mn, rd=set(), wr=set(), kind="s", ws=1, ab=set(), c=set())
    if mn == "s_nop":
        d["ws"] = int(ops[0]) + 1
    elif mn.startswith("s_"):
        pass
    elif mn.startswith("v_mfma"):
        d["kind"] = "mfma2" if "4x4x4" in mn else "mfma8"
        d["wr"] = R[0]
        d["ab"] = R[1] | R[2]
        d["c"] = R[3]
        d["rd"] = R[1] | R[2] | R[3]
    elif mn.startswith("ds_read") or mn.startswith("ds_bpermute"):
        d["kind"] = "mem"
        d["wr"] = R[0]
        d["rd"] = set().union(*R[1:]) | (R[0] if "d16" in mn else set())
    elif mn.startswith("ds_") or mn.startswith("buffer_store"):
        d["kind"] = "mem"
        d["rd"] = allr
    elif mn.startswith("buffer_load"):
        d["kind"] = "mem"
        d["wr"] = R[0]
        d["rd"] = set().union(*R[1:])
    elif mn.startswith("v_cmp") or mn.startswith("v_readlane") or mn.startswith("v_readfirstlane"):
        d["kind"] = "valu"
        d["rd"] = allr
    elif "swap" in mn:
        d["kind"] = "dpp"
        d["rd"] = allr
        d["wr"] = allr
    elif mn.startswith("v_"):
        d["kind"] = "dpp" if "_dpp" in mn else "valu"
        d["wr"] = R[0]
        d["rd"] = set().union(*R[1:]) if len(R) > 1 else set()
        if "_dpp" in mn or "fmac" in mn:
            d["rd"] |= R[0]
    else:
        raise ValueError(t)
    return d

def pad_trace(tr):
    changed = False
    hist = []
    pos = 0
    for ins in tr:
        d = classify(ins.t)
        if d is None:
            continue
        pos += ins.pre
        need = 0
        for (p, pp) in reversed(hist):
            dist = pos - pp - 1
            if dist > 24:
                break
            req = 0
            if p["kind"] in ("mfma8", "mfma2"):
                full = 12 if p["kind"] == "mfma8" else 7
                if d["kind"] in ("mfma8", "mfma2"):
                    if p["wr"] & d["ab"]:
                        req = full
                    elif p["wr"] & d["c"]:
                        req = (0 if p["kind"] == "mfma8" else 2) if p["wr"] == d["c"] else full
                    elif p["wr"] & d["wr"]:
                        req = full
                elif d["kind"] != "s":
                    if p["wr"] & (d["rd"] | d["wr"]):
                        req = full
                    elif p["c"] & d["wr"]:
                        req = full
            elif p["kind"] in ("valu", "dpp"):
                if d["kind"] in ("mfma8", "mfma2") and p["wr"] & d["rd"]:
                    req = 2
                elif d["kind"] == "dpp" and p["wr"] & d["rd"]:
                    req = 2
            need = max(need, req - dist)
        if need > 0:
            ins.pre += need
            pos += need
            changed = True
        hist.append((d, pos))
        pos += d["ws"]
    return changed

def render(l):
    res = []
    for ins in l:
        n = ins.pre
        while n > 0:
            k = min(n, 8)
            res.append(f"  s_nop {k-1}")
            n -= k
        res.append(ins.t)
    return res

def k_sort():
    A(".globl egnn_sort_kernel")
    A(".p2align 8")
    A(".type egnn_sort_kernel,@function")
    A("egnn_sort_kernel:")
    A(f"  s_cmp_ge_u32 s2, {NCH}")
    A("  s_cbranch_scc1 K1_END")
    kstamp(0)
    A("  s_load_dwordx4 s[4:7], s[0:1], 24")
    A("  s_load_dwordx2 s[8:9], s[0:1], 40")
    A("  s_load_dwordx2 s[10:11], s[0:1], 56")
    A("  s_load_dwordx2 s[12:13], s[0:1], 80")
    A("  s_load_dwordx2 s[14:15], s[0:1], 8")
    A("  v_lshlrev_b32 v1, 3, v0")
    A("  v_mov_b32 v2, 0")
    A("  v_mov_b32 v3, 0")
    A("  ds_write_b64 v1, v[2:3]")
    A("  v_lshrrev_b32 v34, 6, v0")
    A(f"  s_mul_i32 s3, s2, {CH}")
    A("  s_movk_i32 s28, 4096")
    A("  s_movk_i32 s29, 8192")
    A("  s_movk_i32 s30, 12288")
    A("  s_mov_b32 s31, 0x51EB851F")
    A("  v_readfirstlane_b32 s65, v34")
    A("  v_add_u32 v4, s3, v0")
    A("  v_lshlrev_b32 v5, 2, v4")
    A("  s_cmp_eq_u32 s65, 15")
    A("  s_cselect_b32 s66, 1, 0")
    A("  s_cmp_lt_u32 s2, 36")
    A("  s_cselect_b32 s66, s66, 0")
    A("  s_waitcnt lgkmcnt(0)")
    kstamp(1)
    srd(20, 6, E * 4)
    so = ["0", "s28", "s29", "s30"]
    for k in range(4):
        A(f"  buffer_load_dword v{10+k}, v5, s[20:23], {so[k]} offen")
    srd(16, 4, E * 4)
    for k in range(4):
        A(f"  buffer_load_dword v{14+k}, v5, s[16:19], {so[k]} offen")
    srd(24, 12, WS_SIZE)
    srd(60, 14, N * 6)
    A("  s_mul_i32 s64, s2, 196")
    A("  v_add_u32 v76, s64, v0")
    A("  v_mul_u32_u24 v77, 6, v76")
    A("  v_lshlrev_b32 v76, 3, v76")
    A("  buffer_load_ushort v78, v77, s[60:63], 0 offen")
    A("  buffer_load_ushort v79, v77, s[60:63], 0 offen offset:2")
    A("  buffer_load_ushort v77, v77, s[60:63], 0 offen offset:4")
    A("  v_mov_b32 v6, 1")
    A("  s_cmp_eq_u32 s66, 0")
    A("  s_cbranch_scc1 K1_NOW")
    A("  s_cmp_ge_u32 s2, 20")
    A("  s_cbranch_scc1 K1_WH")
    srd(44, 8, 145 * 128)
    A("  s_lshr_b32 s38, s2, 1")
    A("  s_lshl_b32 s40, s38, 4")
    A("  s_mov_b32 s41, 8")
    A("  s_mov_b32 s42, 4")
    A("  s_mov_b32 s43, 1")
    A("  s_cmp_lt_u32 s38, 8")
    A("  s_cbranch_scc1 K1_WGO")
    A("  s_movk_i32 s40, 129")
    A("  s_cmp_eq_u32 s38, 8")
    A("  s_cbranch_scc1 K1_WGO")
    A("  s_movk_i32 s40, 128")
    A("  s_movk_i32 s41, 4096")
    A("  s_movk_i32 s42, 4096")
    A("  s_movk_i32 s43, 4096")
    A("  s_branch K1_WGO")
    A("K1_WH:")
    srd(44, 10, 128 * 128)
    A("  s_sub_u32 s38, s2, 20")
    A("  s_lshr_b32 s38, s38, 1")
    A("  s_lshl_b32 s40, s38, 4")
    A("  s_mov_b32 s41, 8")
    A("  s_mov_b32 s42, 4")
    A("  s_mov_b32 s43, 1")
    A("  s_cmp_lt_u32 s38, 4")
    A("  s_cbranch_scc1 K1_WGO")
    A("  s_mov_b32 s41, 4")
    A("  s_mov_b32 s42, 8")
    A("K1_WGO:")
    A("  v_bfe_u32 v60, v0, 5, 1")
    A("  v_mul_lo_u32 v60, v60, s41")
    A("  v_add_u32 v60, s40, v60")
    A("  v_lshlrev_b32 v60, 7, v60")
    A("  v_and_b32 v61, 31, v0")
    A("  s_and_b32 s39, s2, 1")
    A("  s_lshl_b32 s39, s39, 5")
    A("  v_add_u32 v61, s39, v61")
    A("  v_lshl_add_u32 v60, v61, 1, v60")
    for j in range(8):
        A(f"  s_mul_i32 s48, s42, {(j>>2)*128}")
        A(f"  s_mul_i32 s49, s43, {(j&3)*128}")
        A(f"  s_add_u32 s{50+j}, s48, s49")
    for j in range(8):
        A(f"  buffer_load_ushort v{62+j}, v60, s[44:47], s{50+j} offen")
    A("  s_barrier")
    A("  s_waitcnt vmcnt(15)")
    A("  s_branch K1_GO")
    A("K1_NOW:")
    A("  s_sub_u32 s37, s2, 64")
    A("  s_lshl_b32 s37, s37, 10")
    A("  v_add_u32 v60, s37, v0")
    A("  v_and_b32 v61, 0x3fff, v60")
    A("  v_lshrrev_b32 v62, 14, v60")
    A("  v_lshl_or_b32 v61, v62, 15, v61")
    A("  v_lshlrev_b32 v61, 16, v61")
    A("  v_mul_f32 v61, 0x42800000, v61")
    A("  v_mul_f32 v62, 0xbfb8aa3b, v61")
    A("  v_exp_f32 v62, v62")
    A("  s_nop 0")
    A("  v_add_f32 v62, 1.0, v62")
    A("  v_rcp_f32 v62, v62")
    A("  s_nop 0")
    A("  v_mul_f32 v61, v61, v62")
    A("  v_cvt_pk_bf16_f32 v61, v61, v61")
    A("  v_lshlrev_b32 v60, 1, v60")
    A("  s_barrier")
    A("  s_waitcnt vmcnt(7)")
    A("K1_GO:")
    kstamp(2)
    for k in range(4):
        A(f"  v_mul_hi_u32 v{18+k}, v{10+k}, s31")
    for k in range(4):
        A(f"  v_lshrrev_b32 v{18+k}, 3, v{18+k}")
    for k in range(4):
        A(f"  v_mul_u32_u24 v{22+k}, {GS}, v{18+k}")
    for k in range(4):
        A(f"  v_sub_u32 v{22+k}, v{10+k}, v{22+k}")
    for k in range(4):
        A(f"  v_lshlrev_b32 v{18+k}, 2, v{18+k}")
    for k in range(3):
        A(f"  ds_add_rtn_u32 v{26+k}, v{18+k}, v6")
    A("  s_cmp_lg_u32 s65, 0")
    A("  s_cbranch_scc1 K1_A")
    A(f"  s_mov_b32 exec_hi, {(1 << (CH - 3072 - 32)) - 1}")
    A("  ds_add_rtn_u32 v29, v21, v6")
    A("  s_mov_b32 exec_hi, -1")
    A("K1_A:")
    A("  s_waitcnt lgkmcnt(0)")
    A("  s_barrier")
    kstamp(3)
    A("  ds_read_b64 v[30:31], v1")
    A("  s_waitcnt lgkmcnt(0)")
    A("  v_add_u32 v32, v30, v31")
    A("  v_mov_b32 v33, v32")
    wave_scan(33)
    A("  v_lshlrev_b32 v35, 2, v34")
    A("  s_mov_b32 exec_lo, 0")
    A("  s_brev_b32 exec_hi, 1")
    A("  ds_write_b32 v35, v33 offset:8192")
    A("  s_mov_b64 exec, -1")
    A("  s_waitcnt lgkmcnt(0)")
    A("  s_barrier")
    A("  v_and_b32 v37, 15, v0")
    A("  v_lshlrev_b32 v38, 2, v37")
    A("  ds_read_b32 v39, v38 offset:8192")
    A("  v_cmp_lt_u32 vcc, v37, v34")
    A("  s_waitcnt lgkmcnt(0)")
    A("  v_cndmask_b32 v39, 0, v39, vcc")
    for sh in (1, 2, 4, 8):
        A("  s_nop 1")
        A(f"  v_add_u32_dpp v39, v39, v39 row_shr:{sh} row_mask:0xf bank_mask:0xf")
    A("  s_nop 1")
    A("  v_readlane_b32 s34, v39, 15")
    A("  v_sub_u32 v40, v33, v32")
    A("  s_nop 1")
    A("  v_add_u32 v40, s34, v40")
    A("  v_add_u32 v41, v40, v30")
    A("  ds_write_b64 v1, v[40:41]")
    A("  v_lshl_or_b32 v42, v30, 16, v40")
    A("  v_lshl_or_b32 v43, v31, 16, v41")
    A("  s_lshl_b32 s35, s2, 5")
    A(f"  s_add_u32 s35, s35, {WS_TAB}")
    A("  v_lshrrev_b32 v56, 2, v0")
    A("  v_lshlrev_b32 v56, 13, v56")
    A("  v_and_b32 v57, 3, v0")
    A("  v_lshl_add_u32 v56, v57, 3, v56")
    A("  s_waitcnt vmcnt(0) lgkmcnt(0)")
    A("  s_barrier")
    kstamp(4)
    for k in range(4):
        A(f"  ds_read_b32 v{44+k}, v{18+k}")
    A(f"  v_cmp_gt_u32 vcc, {NG//2}, v0")
    A("  s_and_saveexec_b64 s[32:33], vcc")
    A("  buffer_store_dwordx2 v[42:43], v56, s[24:27], s35 offen")
    A("  s_mov_b64 exec, s[32:33]")
    for k in range(4):
        A(f"  v_add_u32 v{48+2*k}, {1024*k}, v4")
        A(f"  v_lshl_or_b32 v{49+2*k}, v{22+k}, 16, v{14+k}")
    for k in range(4):
        A(f"  s_waitcnt lgkmcnt({3 if k < 3 else 3})" if k else "  s_waitcnt lgkmcnt(3)")
        A(f"  v_add_u32 v{44+k}, v{44+k}, v{26+k}")
        A(f"  v_lshlrev_b32 v{44+k}, 3, v{44+k}")
        if k < 3:
            A(f"  ds_write_b64 v{44+k}, v[{48+2*k}:{49+2*k}] offset:{K1_STG}")
    A("  s_cmp_lg_u32 s65, 0")
    A("  s_cbranch_scc1 K1_C")
    A(f"  s_mov_b32 exec_hi, {(1 << (CH - 3072 - 32)) - 1}")
    A(f"  ds_write_b64 v47, v[54:55] offset:{K1_STG}")
    A("  s_mov_b32 exec_hi, -1")
    A("K1_C:")
    A("  v_lshlrev_b32 v44, 4, v0")
    A(f"  s_mul_i32 s36, s2, {CHS*8}")
    A("  s_waitcnt lgkmcnt(0)")
    A("  s_barrier")
    A(f"  ds_read_b128 v[48:51], v44 offset:{K1_STG}")
    A(f"  s_cmp_ge_u32 s65, 9")
    A("  s_cbranch_scc1 K1_E")
    A(f"  ds_read_b128 v[52:55], v44 offset:{K1_STG+16384}")
    A("  s_add_u32 s37, s36, 16384")
    A(f"  v_cmp_gt_u32 vcc, {CHS*8//16 - 1024}, v0")
    A("  s_waitcnt lgkmcnt(0)")
    A("  s_and_saveexec_b64 s[32:33], vcc")
    A("  buffer_store_dwordx4 v[52:55], v44, s[24:27], s37 offen")
    A("  s_mov_b64 exec, s[32:33]")
    A("K1_E:")
    A("  s_waitcnt lgkmcnt(0)")
    A("  buffer_store_dwordx4 v[48:51], v44, s[24:27], s36 offen")
    kstamp(5)
    A("  s_cmp_ge_u32 s65, 4")
    A("  s_cbranch_scc1 K1_D")
    A("  v_lshl_or_b32 v78, v79, 16, v78")
    A("  v_mov_b32 v79, v77")
    A(f"  s_mov_b32 s64, {WS_POS4}")
    A("  v_cmp_gt_u32 vcc, 196, v0")
    A("  s_and_saveexec_b64 s[32:33], vcc")
    A("  buffer_store_dwordx2 v[78:79], v76, s[24:27], s64 offen")
    A("  s_mov_b64 exec, s[32:33]")
    A("K1_D:")
    kstamp(6)
    A("  s_cmp_lg_u32 s66, 0")
    A("  s_cbranch_scc1 K1_WST")
    A("  s_cmp_lt_u32 s2, 64")
    A("  s_cbranch_scc1 K1_FIN")
    A("  s_cmp_ge_u32 s2, 96")
    A("  s_cbranch_scc1 K1_FIN")
    A(f"  s_mov_b32 s37, {WS_LUT}")
    A("  buffer_store_short v61, v60, s[24:27], s37 offen")
    A("  s_branch K1_FIN")
    A("K1_WST:")
    A("  s_cmp_ge_u32 s2, 20")
    A("  s_cbranch_scc1 K1_NOSC")
    for j in range(8):
        A(f"  v_lshlrev_b32 v{62+j}, 16, v{62+j}")
        A(f"  v_mul_f32 v{62+j}, 0x3c800000, v{62+j}")
        A(f"  v_lshrrev_b32 v{62+j}, 16, v{62+j}")
    A("K1_NOSC:")
    for p in range(4):
        A(f"  v_lshl_or_b32 v{72+p}, v{63+2*p}, 16, v{62+2*p}")
    A("  v_and_b32 v61, 63, v0")
    A("  v_lshlrev_b32 v61, 4, v61")
    A("  s_lshl_b32 s48, s2, 10")
    A(f"  s_add_u32 s48, s48, {WS_WF}")
    A("  buffer_store_dwordx4 v[72:75], v61, s[24:27], s48 offen")
    A("K1_FIN:")
    kstamp_store()
    A("K1_END:")
    A("  s_endpgm")

V_HH16, V_HB, V_OHW, V_OHR, V_UR, V_OHA = 1, 2, 3, 4, 5, 6
ENT = [7, 8]
DF = [[252, 253, 254], [9, 10, 11]]
V_W9 = 12
V_WX0, V_WX1 = 13, 15
V_W = 16
V_W8 = 80
V_PA = 88
V_D2 = 92
V_ZERO = 93
V_ACC = 96
V_D1 = 128
V_MP = 160
V_T = 176
V_H = 192
HS = [208, 228]
EA = [224, 244]
V_PS, V_PD = 248, 250
V_LA = 255
V_TMP = 248
V_E, V_HALF = 246, 247

S_H, S_POS, S_EA, S_WS, S_OUT, S_WXS = 16, 20, 24, 28, 32, 36
S_NB, S_T, S_WIN, S_N, S_NT, S_TC = 40, 41, 42, 43, 44, 45
S_NL2E, S_ONE2 = 46, 48
S_BASE, S_PERM, S_G = 50, 51, 52
S_HIM, S_B1M, S_B0M = 54, 56, 58
S_MASKHI = 60
S_UM = 68
S_C128, S_C144, S_C80, S_P4S, S_P4D = 88, 89, 90, 91, 92

def silu_pairs(base, npairs, post):
    for i0 in range(0, npairs, 2):
        idx = [i0, i0 + 1]
        tp = {i0: V_TMP, i0 + 1: V_TMP + 4}
        for i in idx:
            r = base + 2 * i
            A(f"  v_cvt_pk_bf16_f32 v{tp[i]}, v{r}, v{r+1}")
        for i in idx:
            r = base + 2 * i
            A(f"  v_lshlrev_b32 v{r}, 16, v{tp[i]}")
            A(f"  v_and_b32 v{r+1}, s{S_MASKHI}, v{tp[i]}")
        for i in idx:
            r = base + 2 * i
            A(f"  v_pk_mul_f32 {vr(tp[i]+2,2)}, {vr(r,2)}, {sr(S_NL2E,2)}")
        for i in idx:
            A(f"  v_exp_f32 v{tp[i]+2}, v{tp[i]+2}")
            A(f"  v_exp_f32 v{tp[i]+3}, v{tp[i]+3}")
        A("  s_nop 0")
        for i in idx:
            A(f"  v_pk_add_f32 {vr(tp[i]+2,2)}, {vr(tp[i]+2,2)}, {sr(S_ONE2,2)}")
        for i in idx:
            A(f"  v_rcp_f32 v{tp[i]+2}, v{tp[i]+2}")
            A(f"  v_rcp_f32 v{tp[i]+3}, v{tp[i]+3}")
        A("  s_nop 0")
        for i in idx:
            r = base + 2 * i
            A(f"  v_pk_mul_f32 {vr(r,2)}, {vr(r,2)}, {vr(tp[i]+2,2)}")
        for i in idx:
            post(i, base + 2 * i)

def silu_from_packed(p, r, t):
    L = []
    L.append(f"  v_lshlrev_b32 v{r}, 16, v{p}")
    L.append(f"  v_and_b32 v{r+1}, s{S_MASKHI}, v{p}")
    L.append(f"  v_mul_f32 v{r}, 0x42800000, v{r}")
    L.append(f"  v_mul_f32 v{r+1}, 0x42800000, v{r+1}")
    L.append(f"  v_mul_f32 v{t}, s{S_NL2E}, v{r}")
    L.append(f"  v_mul_f32 v{t+1}, s{S_NL2E}, v{r+1}")
    L.append(f"  v_exp_f32 v{t}, v{t}")
    L.append(f"  v_exp_f32 v{t+1}, v{t+1}")
    L.append("  s_nop 0")
    L.append(f"  v_add_f32 v{t}, 1.0, v{t}")
    L.append(f"  v_add_f32 v{t+1}, 1.0, v{t+1}")
    L.append(f"  v_rcp_f32 v{t}, v{t}")
    L.append(f"  v_rcp_f32 v{t+1}, v{t+1}")
    L.append("  s_nop 0")
    L.append(f"  v_mul_f32 v{r}, v{r}, v{t}")
    L.append(f"  v_mul_f32 v{r+1}, v{r+1}, v{t+1}")
    L.append(f"  v_cvt_pk_bf16_f32 v{t}, v{r}, v{r+1}")
    L.append(f"  v_lshlrev_b32 v{r}, 16, v{t}")
    L.append(f"  v_and_b32 v{r+1}, s{S_MASKHI}, v{t}")
    return L

SLOW = []

def front_a(nt, chk):
    D = V_D1 + 16 * nt
    P = V_MP + 8 * nt
    L = []
    for i in range(8):
        L.append(f"  v_cvt_pk_bf16_f32 v{P+i}, v{D+2*i}, v{D+2*i+1}")
    L.append(f"  v_or3_b32 v{chk}, v{P}, v{P+1}, v{P+2}")
    L.append(f"  v_or3_b32 v{chk}, v{chk}, v{P+3}, v{P+4}")
    L.append(f"  v_or3_b32 v{chk}, v{chk}, v{P+5}, v{P+6}")
    L.append(f"  v_or_b32 v{chk}, v{chk}, v{P+7}")
    L.append(f"  v_and_b32 v{chk}, 0x40004000, v{chk}")
    L.append(f"  v_cmp_ne_u32 vcc, 0, v{chk}")
    return L

def lut_pair(nt, i):
    D = V_D1 + 16 * nt
    P = V_MP + 8 * nt
    return [f"  v_add_u32_sdwa v{D+2*i}, v{P+i}, v{P+i} dst_sel:DWORD dst_unused:UNUSED_PAD src0_sel:WORD_0 src1_sel:WORD_0",
            f"  v_add_u32_sdwa v{D+2*i+1}, v{P+i}, v{P+i} dst_sel:DWORD dst_unused:UNUSED_PAD src0_sel:WORD_1 src1_sel:WORD_1",
            f"  ds_read_u16_d16_hi v{D+2*i}, v{D+2*i}",
            f"  ds_read_u16_d16_hi v{D+2*i+1}, v{D+2*i+1}"]

def slow_branch(nt, tag, tmp):
    D = V_D1 + 16 * nt
    P = V_MP + 8 * nt
    S = [f"K2_SLOW{tag}:", "  s_waitcnt lgkmcnt(0)"]
    for i in range(8):
        S += silu_from_packed(P + i, D + 2 * i, tmp)
    S.append("  s_nop 1")
    S.append(f"  s_branch K2_BACK{tag}")
    SLOW.extend(S)
    return [f"  s_cbranch_vccnz K2_SLOW{tag}", f"K2_BACK{tag}:"]

def back(nt, half):
    D = V_D1 + 16 * nt
    P = V_MP + 8 * nt
    L = []
    for i in range(4 * half, 4 * half + 4):
        for k in range(2):
            r = 2 * i + k
            if nt == 0:
                L.append(f"  v_mul_f32 v{V_T+r}, v{D+r}, v{V_WX0}")
            else:
                L.append(f"  v_fmac_f32 v{V_T+r}, v{D+r}, v{V_WX1}")
        L.append(f"  v_perm_b32 v{P+i}, v{D+2*i+1}, v{D+2*i}, s{S_PERM}")
    return L

def pos_math(df):
    t = V_T
    L = []
    L.append(f"  v_lshlrev_b32 v{t}, 16, v{V_PS}")
    L.append(f"  v_and_b32 v{t+1}, s{S_MASKHI}, v{V_PS}")
    L.append(f"  v_lshlrev_b32 v{t+2}, 16, v{V_PS+1}")
    L.append(f"  v_lshlrev_b32 v{t+3}, 16, v{V_PD}")
    L.append(f"  v_and_b32 v{t+4}, s{S_MASKHI}, v{V_PD}")
    L.append(f"  v_lshlrev_b32 v{t+5}, 16, v{V_PD+1}")
    for c in range(3):
        L.append(f"  v_sub_f32 v{t+c}, v{t+3+c}, v{t+c}")
    L.append(f"  v_cvt_pk_bf16_f32 v{t+3}, v{t}, v{t+1}")
    L.append(f"  v_cvt_pk_bf16_f32 v{t+4}, v{t+2}, v{t+2}")
    L.append(f"  v_lshlrev_b32 v{df[0]}, 16, v{t+3}")
    L.append(f"  v_and_b32 v{df[1]}, s{S_MASKHI}, v{t+3}")
    L.append(f"  v_lshlrev_b32 v{df[2]}, 16, v{t+4}")
    for c in range(3):
        L.append(f"  v_mul_f32 v{t+c}, v{df[c]}, v{df[c]}")
    L.append(f"  v_cvt_pk_bf16_f32 v{t+3}, v{t}, v{t+1}")
    L.append(f"  v_cvt_pk_bf16_f32 v{t+4}, v{t+2}, v{t+2}")
    L.append(f"  v_lshlrev_b32 v{t}, 16, v{t+3}")
    L.append(f"  v_and_b32 v{t+1}, s{S_MASKHI}, v{t+3}")
    L.append(f"  v_lshlrev_b32 v{t+2}, 16, v{t+4}")
    L.append(f"  v_add_f32 v{t}, v{t}, v{t+1}")
    L.append(f"  v_add_f32 v{t}, v{t}, v{t+2}")
    L.append(f"  v_cvt_pk_bf16_f32 v{t}, v{t}, v{V_ZERO}")
    L.append(f"  v_cndmask_b32_e64 v{V_D2}, v{t}, v{V_ZERO}, {sr(S_HIM,2)}")
    return L

def pos_loads(ent):
    t = V_T + 6
    return [f"  v_mad_u32_u16 v{t}, v{ent}, 8, 0",
            f"  v_mad_u32_u16 v{t+1}, v{ent}, 8, 0 op_sel:[1,0,0,0]",
            f"  buffer_load_dwordx2 {vr(V_PS,2)}, v{t}, {sr(S_WS,4)}, s{S_P4S} offen",
            f"  buffer_load_dwordx2 {vr(V_PD,2)}, v{t+1}, {sr(S_WS,4)}, s{S_P4D} offen"]

def gather_loads(b):
    L = [f"  v_mad_u32_u16 v{HS[b]+12}, v{ENT[b]}, s{S_C128}, v{V_HH16}",
         f"  v_lshl_add_u32 v{EA[b]}, v{EA[b]}, 5, v{V_HH16}"]
    for s in range(4):
        L.append(f"  buffer_load_dwordx4 {vr(HS[b]+4*s,4)}, v{HS[b]+12}, {sr(S_H,4)}, 0 offen offset:{32*s}")
    L.append(f"  buffer_load_dwordx4 {vr(EA[b],4)}, v{EA[b]}, {sr(S_EA,4)}, 0 offen")
    return L

def h_reads(ent):
    L = [f"  v_mad_u32_u16 v{V_H+12}, v{ent}, s{S_C144}, v{V_HB} op_sel:[1,0,0,0]"]
    for s in range(4):
        L.append(f"  ds_read_b128 {vr(V_H+4*s,4)}, v{V_H+12} offset:{L_HROW+32*s}")
    return L

def oh_set(ent, tmp):
    return [f"  v_mad_u32_u16 v{V_OHA}, v{ent}, s{S_C80}, v{V_OHW} op_sel:[1,0,0,0]",
            f"  v_mov_b32 v{tmp}, 0x3f80",
            f"  ds_write_b16 v{V_OHA}, v{tmp}"]

def mchain(b, nt, order):
    L = []
    d = vr(V_D1 + 16 * nt, 16)
    for q, k in enumerate(order):
        if k[0] == "H":
            a, w = V_H + 4 * int(k[1]), V_W + 4 * (2 * int(k[1]) + nt)
        elif k[0] == "S":
            a, w = HS[b] + 4 * int(k[1]), V_W + 4 * (2 * (4 + int(k[1])) + nt)
        elif k == "E":
            a, w = EA[b], V_W8 + 4 * nt
        else:
            a, w = V_D2, V_W9 + 2 * nt
        c = "0" if q == 0 else d
        L.append(f"  v_mfma_f32_32x32x16_bf16 {d}, {vr(a,4)}, {vr(w,4)}, {c}")
    return L

def u_mfmas():
    L = []
    for q in range(4):
        L.append(f"  v_mfma_f32_4x4x4_16b_bf16 {vr(V_PA,4)}, {vr(V_T+8+2*q,2)}, {vr(V_D1+16+2*q,2)}, {vr(V_PA,4)}")
    return L

def weave(v, m, pos):
    assert len(m) == len(pos)
    L = []
    j = 0
    for i in range(len(v) + 1):
        while j < len(m) and pos[j] == i:
            L.append(m[j])
            j += 1
        if i < len(v):
            L.append(v[i])
    assert j == len(m)
    return L

def phase_x(b, tag):
    M = mchain(b, 1, ["D", "H0", "H1", "H2", "H3", "E", "S0", "S1", "S2", "S3"])
    U = u_mfmas()
    L = [f"  ds_read_b32 v{ENT[b]}, v{V_LA} offset:4"]
    L += front_a(0, V_T)
    L.append("  s_waitcnt lgkmcnt(1)")
    for i in range(8):
        if i < 4:
            L.append(U[i])
        elif i in (4, 6):
            L.append(M[(i - 4) // 2])
        L += lut_pair(0, i)
    L.append(M[2])
    L += slow_branch(0, tag, V_T)
    L.append("  s_waitcnt vmcnt(5)")
    L += weave(pos_math(DF[b ^ 1]), M[3:6], [6, 14, 22])
    L.append("  s_waitcnt lgkmcnt(15)")
    L += pos_loads(ENT[b])
    L.append(M[6])
    L.append("  s_waitcnt lgkmcnt(8)")
    L += weave(back(0, 0), M[7:8], [6])
    L.append("  s_waitcnt lgkmcnt(0)")
    L += weave(back(0, 1), M[8:10], [1, 8])
    for l in L:
        A(l)

def phase_y(b, tag):
    M = mchain(b ^ 1, 0, ["S0", "S1", "S2", "S3", "E", "D", "H0", "H1", "H2", "H3"])
    L = h_reads(ENT[b ^ 1])
    L.append(f"  ds_read_b32 v{EA[b]}, v{V_LA}")
    L.append(f"  v_add_u32 v{V_LA}, 256, v{V_LA}")
    L += front_a(1, HS[b])
    L.append("  s_waitcnt vmcnt(2)")
    for i in range(8):
        if i % 2 == 0:
            L.append(M[i // 2])
        L += lut_pair(1, i)
    L.append(M[4])
    L += slow_branch(1, tag, HS[b])
    L.append("  s_waitcnt lgkmcnt(15)")
    L += gather_loads(b)
    L.append(M[5])
    L.append("  s_waitcnt lgkmcnt(8)")
    L += weave(back(1, 0), M[6:7], [8])
    L.append("  s_waitcnt lgkmcnt(0)")
    L += weave(back(1, 1), M[7:9], [4, 12])
    OH = V_D1 + 16
    L.append(f"  ds_read_b128 {vr(OH,4)}, v{V_OHR}")
    L.append(f"  ds_read_b128 {vr(OH+4,4)}, v{V_OHR} offset:32")
    L.append(f"  ds_write_b16 v{V_OHA}, v{V_ZERO}")
    L += oh_set(ENT[b ^ 1], OH + 8)
    L.append(M[9])
    t = V_T
    for r in range(8):
        L.append(f"  v_permlane16_swap_b32 v{t+r}, v{t+r+8}")
    for r in range(8):
        L.append(f"  v_add_f32 v{t+r}, v{t+r}, v{t+r+8}")
    G = []
    for tt in range(2):
        for mt in range(2):
            d = vr(V_ACC + 16 * mt, 16)
            G.append(f"  v_mfma_f32_32x32x16_bf16 {d}, {vr(V_MP+8*mt+4*tt,4)}, {vr(OH+4*tt,4)}, {d}")
    L.append("  s_waitcnt lgkmcnt(2)")
    L.append(G[0])
    for r in range(4):
        L.append(f"  v_add_f32_dpp v{t+r}, v{t+r}, v{t+r} row_mirror row_mask:0xf bank_mask:0x3")
    for r in range(4):
        L.append(f"  v_add_f32_dpp v{t+r}, v{t+r+4}, v{t+r+4} row_mirror row_mask:0xf bank_mask:0xc")
    L.append(G[1])
    for r in range(2):
        L.append(f"  v_cndmask_b32_e64 v{t+4+r}, v{t+r}, v{t+r+2}, {sr(S_B1M,2)}")
        L.append(f"  v_cndmask_b32_e64 v{t+6+r}, v{t+r+2}, v{t+r}, {sr(S_B1M,2)}")
    L.append(G[2])
    for r in range(2):
        L.append(f"  v_add_f32_dpp v{t+r}, v{t+6+r}, v{t+4+r} quad_perm:[2,3,0,1] row_mask:0xf bank_mask:0xf")
    L.append(f"  v_cndmask_b32_e64 v{t+4}, v{t}, v{t+1}, {sr(S_B0M,2)}")
    L.append(f"  v_cndmask_b32_e64 v{t+6}, v{t+1}, v{t}, {sr(S_B0M,2)}")
    L.append(G[3])
    L.append(f"  v_add_f32_dpp v{t}, v{t+6}, v{t+4} quad_perm:[1,0,3,2] row_mask:0xf bank_mask:0xf")
    L.append(f"  v_add_f32_dpp v{t+1}, v{t}, v{t} row_shl:4 row_mask:0x3 bank_mask:0x5")
    L.append(f"  v_add_f32_dpp v{t+1}, v{t}, v{t} row_shr:4 row_mask:0xc bank_mask:0xa")
    L.append(f"  v_cvt_pk_bf16_f32 v{t+1}, v{t+1}, v{t+1}")
    L.append(f"  v_lshlrev_b32 v{t+1}, 16, v{t+1}")
    for c in range(3):
        L.append(f"  v_mul_f32 v{t+2+c}, v{DF[b][c]}, v{t+1}")
    L.append(f"  v_cvt_pk_bf16_f32 v{t+5}, v{t+2}, v{t+3}")
    L.append(f"  v_cvt_pk_bf16_f32 v{t+6}, v{t+4}, v{t+4}")
    L.append(f"  s_mov_b64 exec, {sr(S_UM,2)}")
    L.append(f"  ds_write_b16 v{V_OHW}, v{t+5} offset:{L_U-L_OH}")
    L.append(f"  ds_write_b16_d16_hi v{V_OHW}, v{t+5} offset:{L_U-L_OH+64}")
    L.append(f"  ds_write_b16 v{V_OHW}, v{t+6} offset:{L_U-L_OH+128}")
    L.append("  s_mov_b64 exec, -1")
    L.append(f"  ds_read_b128 {vr(t+8,4)}, v{V_UR}")
    L.append(f"  ds_read_b128 {vr(t+12,4)}, v{V_UR} offset:32")
    for l in L:
        A(l)

def table_loads():
    A("  v_lshlrev_b32 v249, 5, v0")
    A(f"  s_lshr_b32 s61, s{S_G}, 3")
    A("  s_lshl_b32 s61, s61, 13")
    A(f"  s_and_b32 s62, s{S_G}, 7")
    A("  s_lshl_b32 s62, s62, 2")
    A("  s_add_u32 s62, s62, s61")
    A(f"  s_add_u32 s62, s62, {WS_TAB}")
    A("  s_add_u32 s63, s62, 4096")
    for j in range(4):
        A(f"  buffer_load_dword v{128+j}, v249, {sr(S_WS,4)}, s{62+(j>>1)} offen offset:{2048*(j&1)}")

def table_scan():
    for j in range(4):
        A(f"  v_lshrrev_b32 v{152+j}, 16, v{128+j}")
        A(f"  v_and_b32 v{160+j}, 0xffff, v{128+j}")
    A(f"  v_mul_u32_u24 v249, {CHS}, v0")
    for j in range(4):
        A(f"  v_add_u32 v{160+j}, v{160+j}, v249")
        if j:
            A(f"  v_add_u32 v{160+j}, {64*CHS*j}, v{160+j}")
    A("  v_add_u32 v164, v152, v153")
    A("  v_add_u32 v165, v154, v155")
    A("  v_add_u32 v164, v164, v165")
    A("  v_mov_b32 v165, v164")
    wave_scan(165)
    A(f"  v_readlane_b32 s{S_T}, v165, 63")
    A("  v_sub_u32 v156, v165, v164")
    A("  v_add_u32 v157, v156, v152")
    A("  v_add_u32 v158, v157, v153")
    A("  v_add_u32 v159, v158, v154")

def k_main():
    name = "gather_scatter__cheap_equivariant_egnn__graph_kernel"
    A(f".globl {name}")
    A(".p2align 8")
    A(f".type {name},@function")
    A(f"{name}:")
    A("  s_cmp_ge_u32 s2, 256")
    A("  s_cbranch_scc1 K2_END")
    A("  s_and_b32 s3, s2, 7")
    A("  s_lshl_b32 s3, s3, 5")
    A("  s_lshr_b32 s61, s2, 3")
    A("  s_add_u32 s3, s3, s61")
    A(f"  s_cmp_ge_u32 s3, {NWG2}")
    A("  s_cbranch_scc1 K2_END")
    stamp(0, True, 'AP')
    stamp(1, False, 'AP')
    A("  s_load_dwordx4 s[4:7], s[0:1], 0")
    A("  s_load_dwordx2 s[8:9], s[0:1], 16")
    A("  s_load_dwordx2 s[10:11], s[0:1], 48")
    A("  s_load_dwordx2 s[12:13], s[0:1], 64")
    A("  s_load_dwordx2 s[14:15], s[0:1], 80")
    A("  v_lshrrev_b32 v248, 6, v0")
    A("  v_lshlrev_b32 v255, 4, v0")
    A("  v_readfirstlane_b32 s61, v248")
    A("  v_and_b32 v0, 63, v0")
    A("  s_lshl_b32 s3, s3, 3")
    A(f"  s_add_u32 s{S_G}, s3, s61")
    A(f"  s_mul_i32 s{S_NB}, s{S_G}, {GS}")
    A(f"  s_mul_i32 s{S_BASE}, s61, {WA}")
    A(f"  s_add_u32 s{S_BASE}, s{S_BASE}, 32768")
    A("  s_cmp_lt_u32 s61, 3")
    A("  s_cbranch_scc1 K2_B0")
    A(f"  s_add_u32 s{S_BASE}, s{S_BASE}, {65536 - 3*WA}")
    A("K2_B0:")
    A(f"  s_mov_b32 s{S_NL2E}, 0xbfb8aa3b")
    A(f"  s_mov_b32 s{S_NL2E+1}, 0xbfb8aa3b")
    A(f"  s_mov_b32 s{S_ONE2}, 1.0")
    A(f"  s_mov_b32 s{S_ONE2+1}, 1.0")
    A(f"  s_mov_b32 s{S_PERM}, 0x07060302")
    A(f"  s_mov_b32 s{S_HIM}, 0")
    A(f"  s_mov_b32 s{S_HIM+1}, -1")
    A(f"  s_mov_b32 s{S_B1M}, 0xcccccccc")
    A(f"  s_mov_b32 s{S_B1M+1}, 0xcccccccc")
    A(f"  s_mov_b32 s{S_B0M}, 0xaaaaaaaa")
    A(f"  s_mov_b32 s{S_B0M+1}, 0xaaaaaaaa")
    A(f"  s_mov_b32 s{S_MASKHI}, 0xffff0000")
    A(f"  s_mov_b32 s{S_UM}, 0x0f0f0f0f")
    A(f"  s_mov_b32 s{S_UM+1}, 0xf0f0f0f0")
    A(f"  s_movk_i32 s{S_C128}, 128")
    A(f"  s_movk_i32 s{S_C144}, {HSTR}")
    A(f"  s_movk_i32 s{S_C80}, {OSTR}")
    A(f"  s_mov_b32 s{S_P4S}, {WS_POS4}")
    A(f"  s_lshl_b32 s{S_P4D}, s{S_NB}, 3")
    A(f"  s_add_u32 s{S_P4D}, s{S_P4D}, {WS_POS4}")
    A("  s_waitcnt lgkmcnt(0)")
    stamp(2, False, 'P')
    srd(S_WS, 14, WS_SIZE)
    table_loads()
    srd(S_H, 4, N * 128)
    srd(S_POS, 6, N * 6)
    srd(S_EA, 8, E * 32)
    srd(S_OUT, 12, N * 128 + N * 6)
    srd(S_WXS, 10, 128)
    A(f"  v_and_b32 v{V_E}, 31, v0")
    A(f"  v_lshrrev_b32 v{V_HALF}, 5, v0")
    A("  v_lshlrev_b32 v250, 4, v0")
    A(f"  s_lshl_b32 s61, s{S_NB}, 7")
    for i in range(4):
        A(f"  buffer_load_dwordx4 {vr(132+4*i,4)}, v250, {sr(S_H,4)}, s61 offen offset:{1024*i}")
    A(f"  v_lshlrev_b32 v251, 1, v{V_E}")
    A(f"  buffer_load_ushort v{V_WX0}, v251, {sr(S_WXS,4)}, 0 offen")
    A(f"  buffer_load_ushort v{V_WX1}, v251, {sr(S_WXS,4)}, 0 offen offset:64")
    A("  s_barrier")
    A(f"  s_mov_b32 s61, {WS_LUT}")
    for i in range(8):
        A(f"  buffer_load_dwordx4 {vr(96+4*i,4)}, v255, {sr(S_WS,4)}, s61 offen")
        if i < 7:
            A("  s_add_u32 s61, s61, 8192")
    e = V_E
    A(f"  v_lshlrev_b32 v{V_HH16}, 4, v{V_HALF}")
    A(f"  v_add_u32 v{V_HB}, s{S_BASE}, v{V_HH16}")
    A(f"  v_lshrrev_b32 v248, 4, v{e}")
    A(f"  v_lshlrev_b32 v{V_OHW}, 5, v248")
    A(f"  v_bfe_u32 v248, v{e}, 2, 1")
    A(f"  v_lshl_add_u32 v{V_OHW}, v248, 4, v{V_OHW}")
    A(f"  v_bfe_u32 v248, v{e}, 3, 1")
    A(f"  v_lshl_add_u32 v{V_OHW}, v248, 3, v{V_OHW}")
    A(f"  v_and_b32 v248, 3, v{e}")
    A(f"  v_lshl_add_u32 v{V_OHW}, v248, 1, v{V_OHW}")
    A(f"  v_add_u32 v{V_OHW}, {L_OH}, v{V_OHW}")
    A(f"  v_add_u32 v{V_OHW}, s{S_BASE}, v{V_OHW}")
    A(f"  v_min_u32 v{V_OHR}, 25, v{e}")
    A(f"  v_mul_u32_u24 v{V_OHR}, {OSTR}, v{V_OHR}")
    A(f"  v_add_u32 v{V_OHR}, v{V_OHR}, v{V_HB}")
    A(f"  v_add_u32 v{V_OHR}, {L_OH}, v{V_OHR}")
    A(f"  v_lshl_add_u32 v{V_UR}, v248, 6, v{V_HB}")
    A(f"  v_add_u32 v{V_UR}, {L_U}, v{V_UR}")
    for i in range(1, 4):
        A(f"  v_mov_b32 v{V_D2+i}, 0")
    for i in range(4):
        A(f"  v_mov_b32 v{148+i}, 0")
    A(f"  v_add_u32 v252, s{S_BASE}, v250")
    for i in range(2):
        A(f"  ds_write_b128 v252, v[148:151] offset:{L_OH+1024*i}")
    A(f"  v_cmp_gt_u32 vcc, 17, v0")
    A("  s_and_saveexec_b64 s[66:67], vcc")
    A(f"  ds_write_b128 v252, v[148:151] offset:{L_OH+2048}")
    A("  s_mov_b64 exec, s[66:67]")
    A(f"  v_cmp_gt_u32 vcc, 8, v0")
    A("  s_and_saveexec_b64 s[66:67], vcc")
    A(f"  ds_write_b128 v252, v[148:151] offset:{L_HROW+25*HSTR}")
    A("  s_mov_b64 exec, s[66:67]")
    A("  s_waitcnt vmcnt(14)")
    stamp(3, False, 'P')
    table_scan()
    stamp(2)
    A("  v_lshrrev_b32 v249, 3, v0")
    A(f"  v_mul_u32_u24 v249, {HSTR}, v249")
    A("  v_and_b32 v251, 7, v0")
    A("  v_lshl_add_u32 v249, v251, 4, v249")
    A(f"  v_add_u32 v249, s{S_BASE}, v249")
    A("  s_waitcnt vmcnt(10)")
    for i in range(3):
        A(f"  ds_write_b128 v249, {vr(132+4*i,4)} offset:{L_HROW+8*HSTR*i}")
    A(f"  v_cmp_gt_u32 vcc, 8, v0")
    A("  s_and_saveexec_b64 s[66:67], vcc")
    A(f"  ds_write_b128 v249, {vr(144,4)} offset:{L_HROW+8*HSTR*3}")
    A("  s_mov_b64 exec, s[66:67]")
    A("  s_waitcnt vmcnt(8)")
    A(f"  v_lshlrev_b32 v{V_WX0}, 16, v{V_WX0}")
    A(f"  v_lshlrev_b32 v{V_WX1}, 16, v{V_WX1}")
    A(f"  s_mov_b32 s{S_WIN}, 0")
    A("  s_branch K2_R0")
    A("K2_ROUND:")
    table_loads()
    A("  s_waitcnt vmcnt(0)")
    table_scan()
    A("K2_R0:")
    A(f"  s_sub_u32 s{S_N}, s{S_T}, s{S_WIN}")
    A(f"  s_min_u32 s{S_N}, s{S_N}, {CAP}")
    A(f"  s_add_u32 s61, s{S_WIN}, {CAP}")
    for j in range(4):
        A(f"  s_cmp_lg_u32 s{S_WIN}, 0")
        A(f"  s_cbranch_scc1 K2_NOW{j}")
        A(f"  s_mov_b32 s62, {WS_WF + 5120*j}")
        for q in range(5):
            f = 5 * j + q
            if q == 4:
                A("  s_add_u32 s62, s62, 4096")
            if f < 18:
                dstr = V_W + 4 * f if f < 16 else V_W8 + 4 * (f - 16)
                A(f"  buffer_load_dwordx4 {vr(dstr,4)}, v250, {sr(S_WS,4)}, s62 offen offset:{1024*(q%4)}")
            else:
                A(f"  buffer_load_dword v{V_W9+2*(f-18)}, v250, {sr(S_WS,4)}, s62 offen offset:{1024*(q%4)}")
        A(f"K2_NOW{j}:")
        A(f"  v_max_u32 v164, s{S_WIN}, v{156+j}")
        A(f"  v_add_u32 v165, v{156+j}, v{152+j}")
        A(f"  v_min_u32 v165, s61, v165")
        A(f"  v_sub_u32 v166, v164, v{156+j}")
        A(f"  v_add_u32 v166, v166, v{160+j}")
        A(f"  v_subrev_u32 v167, s{S_WIN}, v164")
        A(f"  v_lshl_add_u32 v167, v167, 3, s{S_BASE}")
        A(f"K2_EXP{j}:")
        A("  v_cmp_lt_u32 vcc, v164, v165")
        A(f"  s_cbranch_vccz K2_EXPD{j}")
        A("  s_mov_b64 exec, vcc")
        A(f"  ds_write_b32 v167, v166 offset:{L_LIST}")
        A("  v_add_u32 v164, 1, v164")
        A("  v_add_u32 v166, 1, v166")
        A("  v_add_u32 v167, 8, v167")
        A(f"  s_branch K2_EXP{j}")
        A(f"K2_EXPD{j}:")
        A("  s_mov_b64 exec, -1")
    stamp(3)
    stamp(4, False, 'P')
    A(f"  v_lshl_add_u32 v249, v0, 3, s{S_BASE}")
    for i in range(CAP // 64):
        A(f"  ds_read_b32 v{164+i}, v249 offset:{L_LIST+512*i}")
    A("  s_waitcnt lgkmcnt(0)")
    for i in range(CAP // 64):
        A(f"  v_lshlrev_b32 v{164+i}, 3, v{164+i}")
        A(f"  buffer_load_dwordx2 {vr(176+2*i,2)}, v{164+i}, {sr(S_WS,4)}, 0 offen")
    A(f"  s_cmp_lg_u32 s{S_WIN}, 0")
    A("  s_cbranch_scc1 K2_R1")
    A("  s_waitcnt vmcnt(28)")
    A("  v_add_u32 v254, 0x10000, v255")
    for i in range(8):
        A(f"  ds_write_b128 v{255 if i < 4 else 254}, {vr(96+4*i,4)} offset:{8192*(i&3)}")
    A("  s_waitcnt lgkmcnt(0)")
    for i in range(32):
        A(f"  v_mov_b32 v{V_ACC+i}, 0")
    for i in range(4):
        A(f"  v_mov_b32 v{V_PA+i}, 0")
    A("  s_barrier")
    if os.environ.get("EXP_HALF"):
        A(f"  s_and_b32 s61, s{S_G}, 7")
        A("  s_cmp_ge_u32 s61, 4")
        A("  s_cbranch_scc1 K2_END")
    A("K2_R1:")
    for i in range(CAP // 64):
        A(f"  s_waitcnt vmcnt({CAP//64-1-i})")
        if int(os.environ.get("EXP_NOMEM", "0")) & 1:
            A(f"  v_and_b32 v{176+2*i}, 1023, v{176+2*i}")
        if int(os.environ.get("EXP_NOMEM", "0")) & 2:
            A(f"  v_and_b32 v{177+2*i}, 0xffff03ff, v{177+2*i}")
        A(f"  ds_write_b64 v249, {vr(176+2*i,2)} offset:{L_LIST+512*i}")
    A(f"  s_cmp_eq_u32 s{S_T}, 0")
    A("  s_cbranch_scc1 K2_EPI")
    A(f"  s_lshl_b32 s61, s{S_N}, 3")
    A("  v_add_u32 v249, s61, v249")
    A("  v_mov_b32 v164, 0")
    A(f"  v_mov_b32 v165, {GS << 16}")
    A(f"  ds_write_b64 v249, v[164:165] offset:{L_LIST}")
    A("  s_mov_b32 exec_hi, 0")
    A(f"  ds_write_b64 v249, v[164:165] offset:{L_LIST+512}")
    A("  s_mov_b32 exec_hi, -1")
    A(f"  s_add_u32 s{S_NT}, s{S_N}, 31")
    A(f"  s_lshr_b32 s{S_NT}, s{S_NT}, 5")
    A(f"  s_mov_b32 s{S_TC}, 0")
    stamp(4)
    stamp(5, False, 'P')
    with seg() as PRO:
        A(f"  v_and_b32 v{V_LA}, 31, v0")
        A(f"  v_lshl_add_u32 v{V_LA}, v{V_LA}, 3, s{S_BASE}")
        A(f"  ds_read_b32 v{ENT[0]}, v{V_LA} offset:4")
        A(f"  ds_read_b32 v{EA[0]}, v{V_LA}")
        A(f"  ds_read_b32 v{ENT[1]}, v{V_LA} offset:260")
        A(f"  ds_read_b32 v{EA[1]}, v{V_LA} offset:256")
        A(f"  v_add_u32 v{V_LA}, 512, v{V_LA}")
        for i in range(8):
            A(f"  v_mov_b32 v{V_T+8+i}, 0")
            A(f"  v_mov_b32 v{V_D1+16+i}, 0")
        A("  s_waitcnt lgkmcnt(2)")
        for l in pos_loads(ENT[0]) + gather_loads(0) + h_reads(ENT[0]) + oh_set(ENT[0], V_T):
            A(l)
        A("  s_waitcnt vmcnt(5)")
        for l in pos_math(DF[0]):
            A(l)
        A("  s_waitcnt lgkmcnt(5)")
        for l in pos_loads(ENT[1]) + gather_loads(1):
            A(l)
        A("  s_waitcnt vmcnt(7) lgkmcnt(0)")
        for l in mchain(0, 0, ["S0", "S1", "S2", "S3", "E", "D", "H0", "H1", "H2", "H3"]):
            A(l)
        A("  s_nop 7")
        A("  s_nop 3")
        stamp(6, False, 'P')
    with seg() as X0:
        phase_x(0, "0a")
    with seg() as Y0:
        phase_y(0, "0b")
        A(f"  s_add_u32 s{S_TC}, s{S_TC}, 1")
        A(f"  s_cmp_ge_u32 s{S_TC}, s{S_NT}")
        A("  s_cbranch_scc1 K2_LOOPD")
    with seg() as X1:
        phase_x(1, "1a")
    with seg() as Y1:
        phase_y(1, "1b")
        A(f"  s_add_u32 s{S_TC}, s{S_TC}, 1")
        A(f"  s_cmp_lt_u32 s{S_TC}, s{S_NT}")
        A("  s_cbranch_scc1 K2_LOOP")
    with seg() as TAIL:
        A("  s_waitcnt lgkmcnt(0)")
        for l in u_mfmas():
            A(l)
        A(f"  ds_write_b16 v{V_OHA}, v{V_ZERO}")
        A("  s_waitcnt vmcnt(0)")
        A(f"  s_add_u32 s{S_WIN}, s{S_WIN}, {CAP}")
        A(f"  s_cmp_lt_u32 s{S_WIN}, s{S_T}")
        A("  s_cbranch_scc1 K2_ROUND")
    with seg() as EPI:
        A("K2_EPI:")
        A("  s_waitcnt vmcnt(0)")
        stamp(5)
        A("  v_lshlrev_b32 v250, 4, v0")
        A(f"  s_mov_b32 s61, {WS_WF+20*1024}")
        for f in range(16):
            if f and f % 4 == 0:
                A("  s_add_u32 s61, s61, 4096")
            A(f"  buffer_load_dwordx4 {vr(V_W+4*f,4)}, v250, {sr(S_WS,4)}, s61 offen offset:{1024*(f%4)}")
        A(f"  v_and_b32 v{e}, 31, v0")
        A(f"  v_min_u32 v249, 25, v{e}")
        A(f"  v_mul_u32_u24 v249, {HSTR}, v249")
        A(f"  v_add_u32 v251, v249, v{V_HB}")
        for s in range(4):
            A(f"  ds_read_b128 {vr(V_T+4*s,4)}, v251 offset:{L_HROW+32*s}")
        A(f"  v_lshrrev_b32 v252, 1, v{V_HH16}")
        A("  v_add_u32 v252, v249, v252")
        A(f"  v_add_u32 v252, s{S_BASE}, v252")
        for ot in range(2):
            for q in range(4):
                A(f"  ds_read_b64 {vr(192+8*ot+2*q,2)}, v252 offset:{L_HROW+64*ot+16*q}")
        for c in range(3):
            A(f"  v_mov_b32 v{218+c}, v{V_PA+c}")
        for c in range(3):
            A(f"  v_permlane32_swap_b32 v{218+c}, v{V_PA+c}")
        for c in range(3):
            A(f"  v_add_f32 v{218+c}, v{218+c}, v{V_PA+c}")
        A(f"  v_add_u32 v230, s{S_NB}, v{e}")
        A("  v_mul_u32_u24 v231, 6, v230")
        for c in range(3):
            A(f"  buffer_load_ushort v{222+c}, v231, {sr(S_POS,4)}, 0 offen offset:{2*c}")
        for mt in range(2):
            for i in range(8):
                A(f"  v_cvt_pk_bf16_f32 v{V_MP+8*mt+i}, v{V_ACC+16*mt+2*i}, v{V_ACC+16*mt+2*i+1}")
        A("  s_waitcnt vmcnt(3) lgkmcnt(0)")
        bops = [vr(V_T + 4 * s, 4) for s in range(4)] + [vr(V_MP + 4 * s, 4) for s in range(4)]
        for ks in range(8):
            for ot in range(2):
                d = vr(V_D1 + 16 * ot, 16)
                c = "0" if ks == 0 else d
                A(f"  v_mfma_f32_32x32x16_bf16 {d}, {vr(V_W+4*(2*ks+ot),4)}, {bops[ks]}, {c}")
        A("  s_nop 7")
        A("  s_nop 7")
        def post2(i, r):
            A(f"  v_cvt_pk_bf16_f32 v{V_T}, v{r}, v{r+1}")
            A(f"  v_lshlrev_b32 v{r}, 16, v{V_T}")
            A(f"  v_and_b32 v{r+1}, s{S_MASKHI}, v{V_T}")
            A(f"  v_lshlrev_b32 v{V_T+2}, 16, v{192+i}")
            A(f"  v_and_b32 v{V_T+3}, s{S_MASKHI}, v{192+i}")
            A(f"  v_pk_add_f32 {vr(r,2)}, {vr(r,2)}, {vr(V_T+2,2)}")
            A(f"  v_cvt_pk_bf16_f32 v{V_MP+i}, v{r}, v{r+1}")
        silu_pairs(V_D1, 16, post2)
        A(f"  v_cmp_gt_u32 vcc, {GS}, v{e}")
        A("  s_and_saveexec_b64 s[66:67], vcc")
        A(f"  v_lshrrev_b32 v252, 1, v{V_HH16}")
        A("  v_lshl_add_u32 v252, v230, 7, v252")
        for ot in range(2):
            for q in range(4):
                A(f"  buffer_store_dwordx2 {vr(V_MP+8*ot+2*q,2)}, v252, {sr(S_OUT,4)}, 0 offen offset:{64*ot+16*q}")
        A("  s_waitcnt vmcnt(8)")
        A(f"  v_cvt_pk_bf16_f32 v226, v218, v219")
        A(f"  v_cvt_pk_bf16_f32 v227, v220, v220")
        A(f"  v_lshlrev_b32 v218, 16, v226")
        A(f"  v_and_b32 v219, s{S_MASKHI}, v226")
        A(f"  v_lshlrev_b32 v220, 16, v227")
        for c in range(3):
            A(f"  v_lshlrev_b32 v{222+c}, 16, v{222+c}")
            A(f"  v_add_f32 v{222+c}, v{222+c}, v{218+c}")
            A(f"  v_cvt_pk_bf16_f32 v{222+c}, v{222+c}, v{222+c}")
        A("  v_cmp_gt_u32 vcc, 32, v0")
        A("  s_and_b64 exec, exec, vcc")
        A(f"  s_mov_b32 s61, {N*128}")
        for c in range(3):
            A(f"  buffer_store_short v{222+c}, v231, {sr(S_OUT,4)}, s61 offen offset:{2*c}")
        if STAMP and SSET != "K":
            A("  s_waitcnt vmcnt(0)")
            stamp(6)
            stamp(7, True, 'AP')
            A("  s_mov_b64 exec, 1")
            for i in range(8):
                A(f"  v_mov_b32 v{16+i}, s{70+2*i}")
            A(f"  v_mov_b32 v24, s{S_T}")
            A("  v_mov_b32 v25, s2")
            A(f"  s_lshl_b32 s61, s{S_G}, 6")
            A("  s_add_u32 s61, s61, 0x1000000")
            A("  v_mov_b32 v30, 0")
            A(f"  buffer_store_dwordx4 v[16:19], v30, {sr(S_WS,4)}, s61 offen")
            A(f"  buffer_store_dwordx4 v[20:23], v30, {sr(S_WS,4)}, s61 offen offset:16")
            A(f"  buffer_store_dwordx2 v[24:25], v30, {sr(S_WS,4)}, s61 offen offset:32")
    traces = [PRO + X0 + Y0 + X1 + Y1 + X0 + Y0 + X1 + Y1, X0 + Y0 + TAIL + EPI, X1 + Y1 + TAIL + EPI]
    while any([pad_trace(t) for t in traces]):
        pass
    emit(PRO)
    A("K2_LOOP:")
    emit(X0); emit(Y0); emit(X1); emit(Y1)
    A("K2_LOOPD:")
    emit(TAIL)
    emit(EPI)
    A("K2_END:")
    A("  s_endpgm")
    for l in SLOW:
        A(l)
    npad = sum(i.pre for i in X0 + Y0)
    nins = sum(1 for i in X0 + Y0 if classify(i.t))
    sys.stderr.write(f"tile instrs {nins}, pad states {npad}: " + ", ".join(f"{i.pre}@{i.t.split()[0]}" for i in X0 + Y0 if i.pre) + "\n")

LDS_MAIN = 163840
A(HEADER.rstrip("\n"))
A(f"; @launch kernel=egnn_sort_kernel grid=({NCH},1,1) block=(1024,1,1) lds={K1_LDS}")
A(f"; @launch kernel=gather_scatter__cheap_equivariant_egnn__graph_kernel grid=(256,1,1) block=(512,1,1) lds={LDS_MAIN}")
A('.amdgcn_target "amdgcn-amd-amdhsa--gfx950"')
A(".text")
k_sort()
k_main()
A('.section .rodata,"a"')
for nm, nv in (("egnn_sort_kernel", 80), ("gather_scatter__cheap_equivariant_egnn__graph_kernel", 256)):
    A(".p2align 6")
    A(f".amdhsa_kernel {nm}")
    A(f"  .amdhsa_next_free_vgpr {nv}")
    A("  .amdhsa_next_free_sgpr 102")
    A(f"  .amdhsa_accum_offset {nv}")
    A("  .amdhsa_group_segment_fixed_size 0")
    A("  .amdhsa_kernarg_size 88")
    A("  .amdhsa_user_sgpr_count 2")
    A("  .amdhsa_user_sgpr_kernarg_segment_ptr 1")
    A("  .amdhsa_system_sgpr_workgroup_id_x 1")
    A("  .amdhsa_float_denorm_mode_32 3")
    A(".end_amdhsa_kernel")
print("\n".join(render(out)))
```

```python
import sys, os, re

N = 50000
E = 800000
NCH = 256
CH = E // NCH
GS = 25
NG = N // GS
CAP = 512
CHS = 3136
K1_STG = 8448
K1_LDS = K1_STG + CHS * 8

WS_REC = 0
WS_TAB = 0x800000
WS_WF = 0xC00000
WS_LUT = 0xC10000
WS_POS4 = 0xC20000
NWG2 = 250
STAMP = int(os.environ.get("STAMP", "0"))
WS_SIZE = 0x2000000 if STAMP else 0x1000000

L_G = 0
L_LIST = 4096
L_HROW = L_LIST + 2560 + (CAP + 96) * 4
HSTR = 144
L_OH = L_HROW + 25 * HSTR + 128
OSTR = 80
L_U = L_OH + 25 * OSTR + 64
WA = 16384
assert L_HROW % 16 == 0 and L_OH % 16 == 0 and L_U % 16 == 0 and L_U + 256 <= WA


class I:
    __slots__ = ("t", "pre")
    def __init__(s, t):
        s.t = t
        s.pre = 0

out = []
CUR = [out]
def A(s=""):
    CUR[-1].append(I(s))

class seg:
    def __enter__(s):
        s.l = []
        CUR.append(s.l)
        return s.l
    def __exit__(s, *a):
        CUR.pop()

def emit(l):
    CUR[-1].extend(l)

def vr(b, n=1):
    return f"v{b}" if n == 1 else f"v[{b}:{b+n-1}]"
def sr(b, n=1):
    return f"s{b}" if n == 1 else f"s[{b}:{b+n-1}]"

HEADER = open(sys.argv[1]).read() if len(sys.argv) > 1 else ""

def srd(d, b, nbytes):
    A(f"  s_mov_b32 s{d}, s{b}")
    A(f"  s_and_b32 s{d+1}, s{b+1}, 0xffff")
    A(f"  s_mov_b32 s{d+2}, {nbytes}")
    A(f"  s_mov_b32 s{d+3}, 0x00020000")

SSET = os.environ.get("SSET", "A")
def stamp(i, real=False, sset="A"):
    if not STAMP or SSET not in sset:
        return
    A(f"  s_{'memrealtime' if real else 'memtime'} s[{70+2*i}:{71+2*i}]")
    A("  s_waitcnt lgkmcnt(0)")

def kstamp(i):
    if not STAMP or SSET != "K":
        return
    A(f"  s_memrealtime s[{70+2*i}:{71+2*i}]")
    A("  s_waitcnt lgkmcnt(0)")

def kstamp_store():
    if not STAMP or SSET != "K":
        return
    A("  s_waitcnt vmcnt(0)")
    kstamp(7)
    A("  v_lshrrev_b32 v60, 6, v0")
    A("  s_nop 3")
    A("  v_readfirstlane_b32 s86, v60")
    A("  s_nop 3")
    A("  s_mov_b64 exec, 1")
    for i in range(8):
        A(f"  v_mov_b32 v{60+i}, s{70+2*i}")
    A("  s_lshl_b32 s87, s2, 4")
    A("  s_add_u32 s87, s87, s86")
    A("  s_lshl_b32 s87, s87, 5")
    A("  s_add_u32 s87, s87, 0x1000000")
    A("  v_mov_b32 v70, 0")
    A("  buffer_store_dwordx4 v[60:63], v70, s[24:27], s87 offen")
    A("  buffer_store_dwordx4 v[64:67], v70, s[24:27], s87 offen offset:16")
    A("  s_mov_b64 exec, -1")

def wave_scan(v):
    for sh in (1, 2, 4, 8):
        A("  s_nop 1")
        A(f"  v_add_u32_dpp v{v}, v{v}, v{v} row_shr:{sh} row_mask:0xf bank_mask:0xf")
    A("  s_nop 1")
    A(f"  v_add_u32_dpp v{v}, v{v}, v{v} row_bcast:15 row_mask:0xa bank_mask:0xf")
    A("  s_nop 1")
    A(f"  v_add_u32_dpp v{v}, v{v}, v{v} row_bcast:31 row_mask:0xc bank_mask:0xf")
    A("  s_nop 1")

RE_V = re.compile(r"^v(\d+)$|^v\[(\d+):(\d+)\]$")
def regs_of(tok):
    tok = tok.strip().split(" ")[0]
    m = RE_V.match(tok)
    if not m:
        return set()
    if m.group(1) is not None:
        return {int(m.group(1))}
    return set(range(int(m.group(2)), int(m.group(3)) + 1))

def classify(t):
    t = t.split(";")[0].strip()
    if not t or t.endswith(":") or t.startswith("."):
        return None
    p = t.split(None, 1)
    mn = p[0]
    ops = [o.strip() for o in p[1].split(",")] if len(p) > 1 else []
    R = [regs_of(o) for o in ops]
    allr = set().union(*R) if R else set()
    d = dict(mn=mn, rd=set(), wr=set(), kind="s", ws=1, ab=set(), c=set())
    if mn == "s_nop":
        d["ws"] = int(ops[0]) + 1
    elif mn.startswith("s_"):
        pass
    elif mn.startswith("v_mfma"):
        d["kind"] = "mfma2" if "4x4x4" in mn else "mfma8"
        d["wr"] = R[0]
        d["ab"] = R[1] | R[2]
        d["c"] = R[3]
        d["rd"] = R[1] | R[2] | R[3]
    elif mn.startswith("ds_read") or mn.startswith("ds_bpermute"):
        d["kind"] = "mem"
        d["wr"] = R[0]
        d["rd"] = set().union(*R[1:]) | (R[0] if "d16" in mn else set())
    elif mn.startswith("ds_") or mn.startswith("buffer_store"):
        d["kind"] = "mem"
        d["rd"] = allr
    elif mn.startswith("buffer_load") and t.endswith(" lds"):
        d["kind"] = "mem"
        d["rd"] = allr
    elif mn.startswith("buffer_load"):
        d["kind"] = "mem"
        d["wr"] = R[0]
        d["rd"] = set().union(*R[1:])
    elif mn.startswith("v_cmp") or mn.startswith("v_readlane") or mn.startswith("v_readfirstlane"):
        d["kind"] = "valu"
        d["rd"] = allr
    elif "swap" in mn:
        d["kind"] = "dpp"
        d["rd"] = allr
        d["wr"] = allr
    elif mn.startswith("v_"):
        d["kind"] = "dpp" if "_dpp" in mn else "valu"
        d["wr"] = R[0]
        d["rd"] = set().union(*R[1:]) if len(R) > 1 else set()
        if "_dpp" in mn or "fmac" in mn:
            d["rd"] |= R[0]
    else:
        raise ValueError(t)
    return d

def pad_trace(tr):
    changed = False
    hist = []
    pos = 0
    for ins in tr:
        d = classify(ins.t)
        if d is None:
            continue
        pos += ins.pre
        need = 0
        for (p, pp) in reversed(hist):
            dist = pos - pp - 1
            if dist > 24:
                break
            req = 0
            if p["kind"] in ("mfma8", "mfma2"):
                full = 12 if p["kind"] == "mfma8" else 7
                if d["kind"] in ("mfma8", "mfma2"):
                    if p["wr"] & d["ab"]:
                        req = full
                    elif p["wr"] & d["c"]:
                        req = (0 if p["kind"] == "mfma8" else 2) if p["wr"] == d["c"] else full
                    elif p["wr"] & d["wr"]:
                        req = full
                elif d["kind"] != "s":
                    if p["wr"] & (d["rd"] | d["wr"]):
                        req = full
                    elif p["c"] & d["wr"]:
                        req = full
            elif p["kind"] in ("valu", "dpp"):
                if d["kind"] in ("mfma8", "mfma2") and p["wr"] & d["rd"]:
                    req = 2
                elif d["kind"] == "dpp" and p["wr"] & d["rd"]:
                    req = 2
            need = max(need, req - dist)
        if need > 0:
            ins.pre += need
            pos += need
            changed = True
        hist.append((d, pos))
        pos += d["ws"]
    return changed

def render(l):
    res = []
    for ins in l:
        n = ins.pre
        while n > 0:
            k = min(n, 8)
            res.append(f"  s_nop {k-1}")
            n -= k
        res.append(ins.t)
    return res

def k_sort():
    A(".globl egnn_sort_kernel")
    A(".p2align 8")
    A(".type egnn_sort_kernel,@function")
    A("egnn_sort_kernel:")
    A(f"  s_cmp_ge_u32 s2, {NCH}")
    A("  s_cbranch_scc1 K1_END")
    kstamp(0)
    A("  s_load_dwordx4 s[4:7], s[0:1], 24")
    A("  s_load_dwordx2 s[8:9], s[0:1], 40")
    A("  s_load_dwordx2 s[10:11], s[0:1], 56")
    A("  s_load_dwordx2 s[12:13], s[0:1], 80")
    A("  s_load_dwordx2 s[14:15], s[0:1], 8")
    A("  v_lshlrev_b32 v1, 3, v0")
    A("  v_mov_b32 v2, 0")
    A("  v_mov_b32 v3, 0")
    A("  ds_write_b64 v1, v[2:3]")
    A("  v_lshrrev_b32 v34, 6, v0")
    A(f"  s_mul_i32 s3, s2, {CH}")
    A("  s_movk_i32 s28, 4096")
    A("  s_movk_i32 s29, 8192")
    A("  s_movk_i32 s30, 12288")
    A("  s_mov_b32 s31, 0x51EB851F")
    A("  v_readfirstlane_b32 s65, v34")
    A("  v_add_u32 v4, s3, v0")
    A("  v_lshlrev_b32 v5, 2, v4")
    A("  s_cmp_eq_u32 s65, 15")
    A("  s_cselect_b32 s66, 1, 0")
    A("  s_cmp_lt_u32 s2, 36")
    A("  s_cselect_b32 s66, s66, 0")
    A("  s_waitcnt lgkmcnt(0)")
    kstamp(1)
    srd(20, 6, E * 4)
    so = ["0", "s28", "s29", "s30"]
    for k in range(4):
        A(f"  buffer_load_dword v{10+k}, v5, s[20:23], {so[k]} offen")
    srd(16, 4, E * 4)
    for k in range(4):
        A(f"  buffer_load_dword v{14+k}, v5, s[16:19], {so[k]} offen")
    srd(24, 12, WS_SIZE)
    srd(60, 14, N * 6)
    A("  s_mul_i32 s64, s2, 196")
    A("  v_add_u32 v76, s64, v0")
    A("  v_mul_u32_u24 v77, 6, v76")
    A("  v_lshlrev_b32 v76, 3, v76")
    A("  buffer_load_ushort v78, v77, s[60:63], 0 offen")
    A("  buffer_load_ushort v79, v77, s[60:63], 0 offen offset:2")
    A("  buffer_load_ushort v77, v77, s[60:63], 0 offen offset:4")
    A("  v_mov_b32 v6, 1")
    A("  s_cmp_eq_u32 s66, 0")
    A("  s_cbranch_scc1 K1_NOW")
    A("  s_cmp_ge_u32 s2, 20")
    A("  s_cbranch_scc1 K1_WH")
    srd(44, 8, 145 * 128)
    A("  s_lshr_b32 s38, s2, 1")
    A("  s_lshl_b32 s40, s38, 4")
    A("  s_mov_b32 s41, 8")
    A("  s_mov_b32 s42, 4")
    A("  s_mov_b32 s43, 1")
    A("  s_cmp_lt_u32 s38, 8")
    A("  s_cbranch_scc1 K1_WGO")
    A("  s_movk_i32 s40, 129")
    A("  s_cmp_eq_u32 s38, 8")
    A("  s_cbranch_scc1 K1_WGO")
    A("  s_movk_i32 s40, 128")
    A("  s_movk_i32 s41, 0")
    A("  s_movk_i32 s42, 4096")
    A("  s_movk_i32 s43, 4096")
    A("  s_branch K1_WGO")
    A("K1_WH:")
    srd(44, 10, 128 * 128)
    A("  s_sub_u32 s38, s2, 20")
    A("  s_lshr_b32 s38, s38, 1")
    A("  s_lshl_b32 s40, s38, 4")
    A("  s_mov_b32 s41, 8")
    A("  s_mov_b32 s42, 4")
    A("  s_mov_b32 s43, 1")
    A("  s_cmp_lt_u32 s38, 4")
    A("  s_cbranch_scc1 K1_WGO")
    A("  s_mov_b32 s41, 4")
    A("  s_mov_b32 s42, 8")
    A("K1_WGO:")
    A("  v_bfe_u32 v60, v0, 5, 1")
    A("  v_mul_lo_u32 v60, v60, s41")
    A("  v_add_u32 v60, s40, v60")
    A("  v_lshlrev_b32 v60, 7, v60")
    A("  v_and_b32 v61, 31, v0")
    A("  s_and_b32 s39, s2, 1")
    A("  s_lshl_b32 s39, s39, 5")
    A("  v_add_u32 v61, s39, v61")
    A("  v_lshl_add_u32 v60, v61, 1, v60")
    for j in range(8):
        A(f"  s_mul_i32 s48, s42, {(j>>2)*128}")
        A(f"  s_mul_i32 s49, s43, {(j&3)*128}")
        A(f"  s_add_u32 s{50+j}, s48, s49")
    for j in range(8):
        A(f"  buffer_load_ushort v{62+j}, v60, s[44:47], s{50+j} offen")
    A("  s_barrier")
    A("  s_waitcnt vmcnt(15)")
    A("  s_branch K1_GO")
    A("K1_NOW:")
    A("  s_sub_u32 s37, s2, 64")
    A("  s_lshl_b32 s37, s37, 10")
    A("  v_add_u32 v60, s37, v0")
    A("  v_and_b32 v61, 0x1fff, v60")
    A("  v_lshrrev_b32 v62, 13, v60")
    A("  v_lshl_or_b32 v61, v62, 15, v61")
    A("  v_lshlrev_b32 v61, 16, v61")
    A("  v_mul_f32 v61, 0x62800000, v61")
    A("  v_mul_f32 v62, 0xbfb8aa3b, v61")
    A("  v_exp_f32 v62, v62")
    A("  s_nop 0")
    A("  v_add_f32 v62, 1.0, v62")
    A("  v_rcp_f32 v62, v62")
    A("  s_nop 0")
    A("  v_mul_f32 v61, v61, v62")
    A("  v_cvt_pk_bf16_f32 v61, v61, v61")
    A("  v_lshlrev_b32 v60, 1, v60")
    A("  s_barrier")
    A("  s_waitcnt vmcnt(7)")
    A("K1_GO:")
    kstamp(2)
    for k in range(4):
        A(f"  v_mul_hi_u32 v{18+k}, v{10+k}, s31")
    for k in range(4):
        A(f"  v_lshrrev_b32 v{18+k}, 3, v{18+k}")
    for k in range(4):
        A(f"  v_mul_u32_u24 v{22+k}, {GS}, v{18+k}")
    for k in range(4):
        A(f"  v_sub_u32 v{22+k}, v{10+k}, v{22+k}")
    for k in range(4):
        A(f"  v_lshlrev_b32 v{18+k}, 2, v{18+k}")
    for k in range(3):
        A(f"  ds_add_rtn_u32 v{26+k}, v{18+k}, v6")
    A("  s_cmp_lg_u32 s65, 0")
    A("  s_cbranch_scc1 K1_A")
    A(f"  s_mov_b32 exec_hi, {(1 << (CH - 3072 - 32)) - 1}")
    A("  ds_add_rtn_u32 v29, v21, v6")
    A("  s_mov_b32 exec_hi, -1")
    A("K1_A:")
    A("  s_waitcnt lgkmcnt(0)")
    A("  s_barrier")
    kstamp(3)
    A("  ds_read_b64 v[30:31], v1")
    A("  s_waitcnt lgkmcnt(0)")
    A("  v_add_u32 v32, v30, v31")
    A("  v_mov_b32 v33, v32")
    wave_scan(33)
    A("  v_lshlrev_b32 v35, 2, v34")
    A("  s_mov_b32 exec_lo, 0")
    A("  s_brev_b32 exec_hi, 1")
    A("  ds_write_b32 v35, v33 offset:8192")
    A("  s_mov_b64 exec, -1")
    A("  s_waitcnt lgkmcnt(0)")
    A("  s_barrier")
    A("  v_and_b32 v37, 15, v0")
    A("  v_lshlrev_b32 v38, 2, v37")
    A("  ds_read_b32 v39, v38 offset:8192")
    A("  v_cmp_lt_u32 vcc, v37, v34")
    A("  s_waitcnt lgkmcnt(0)")
    A("  v_cndmask_b32 v39, 0, v39, vcc")
    for sh in (1, 2, 4, 8):
        A("  s_nop 1")
        A(f"  v_add_u32_dpp v39, v39, v39 row_shr:{sh} row_mask:0xf bank_mask:0xf")
    A("  s_nop 1")
    A("  v_readlane_b32 s34, v39, 15")
    A("  v_sub_u32 v40, v33, v32")
    A("  s_nop 1")
    A("  v_add_u32 v40, s34, v40")
    A("  v_add_u32 v41, v40, v30")
    A("  ds_write_b64 v1, v[40:41]")
    A("  v_lshl_or_b32 v42, v30, 16, v40")
    A("  v_lshl_or_b32 v43, v31, 16, v41")
    A("  s_lshl_b32 s35, s2, 5")
    A(f"  s_add_u32 s35, s35, {WS_TAB}")
    A("  v_lshrrev_b32 v56, 2, v0")
    A("  v_lshlrev_b32 v56, 13, v56")
    A("  v_and_b32 v57, 3, v0")
    A("  v_lshl_add_u32 v56, v57, 3, v56")
    A("  s_waitcnt vmcnt(0) lgkmcnt(0)")
    A("  s_barrier")
    kstamp(4)
    for k in range(4):
        A(f"  ds_read_b32 v{44+k}, v{18+k}")
    A(f"  v_cmp_gt_u32 vcc, {NG//2}, v0")
    A("  s_and_saveexec_b64 s[32:33], vcc")
    A("  buffer_store_dwordx2 v[42:43], v56, s[24:27], s35 offen")
    A("  s_mov_b64 exec, s[32:33]")
    for k in range(4):
        A(f"  v_add_u32 v{48+2*k}, {1024*k}, v4")
        A(f"  v_lshl_or_b32 v{49+2*k}, v{22+k}, 16, v{14+k}")
    for k in range(4):
        A(f"  s_waitcnt lgkmcnt({3 if k < 3 else 3})" if k else "  s_waitcnt lgkmcnt(3)")
        A(f"  v_add_u32 v{44+k}, v{44+k}, v{26+k}")
        A(f"  v_lshlrev_b32 v{44+k}, 3, v{44+k}")
        if k < 3:
            A(f"  ds_write_b64 v{44+k}, v[{48+2*k}:{49+2*k}] offset:{K1_STG}")
    A("  s_cmp_lg_u32 s65, 0")
    A("  s_cbranch_scc1 K1_C")
    A(f"  s_mov_b32 exec_hi, {(1 << (CH - 3072 - 32)) - 1}")
    A(f"  ds_write_b64 v47, v[54:55] offset:{K1_STG}")
    A("  s_mov_b32 exec_hi, -1")
    A("K1_C:")
    A("  v_lshlrev_b32 v44, 4, v0")
    A(f"  s_mul_i32 s36, s2, {CHS*8}")
    A("  s_waitcnt lgkmcnt(0)")
    A("  s_barrier")
    A(f"  ds_read_b128 v[48:51], v44 offset:{K1_STG}")
    A(f"  s_cmp_ge_u32 s65, 9")
    A("  s_cbranch_scc1 K1_E")
    A(f"  ds_read_b128 v[52:55], v44 offset:{K1_STG+16384}")
    A("  s_add_u32 s37, s36, 16384")
    A(f"  v_cmp_gt_u32 vcc, {CHS*8//16 - 1024}, v0")
    A("  s_waitcnt lgkmcnt(0)")
    A("  s_and_saveexec_b64 s[32:33], vcc")
    A("  buffer_store_dwordx4 v[52:55], v44, s[24:27], s37 offen")
    A("  s_mov_b64 exec, s[32:33]")
    A("K1_E:")
    A("  s_waitcnt lgkmcnt(0)")
    A("  buffer_store_dwordx4 v[48:51], v44, s[24:27], s36 offen")
    kstamp(5)
    A("  s_cmp_ge_u32 s65, 4")
    A("  s_cbranch_scc1 K1_D")
    A("  v_lshl_or_b32 v78, v79, 16, v78")
    A("  v_mov_b32 v79, v77")
    A(f"  s_mov_b32 s64, {WS_POS4}")
    A("  v_cmp_gt_u32 vcc, 196, v0")
    A("  s_and_saveexec_b64 s[32:33], vcc")
    A("  buffer_store_dwordx2 v[78:79], v76, s[24:27], s64 offen")
    A("  s_mov_b64 exec, s[32:33]")
    A("K1_D:")
    kstamp(6)
    A("  s_cmp_lg_u32 s66, 0")
    A("  s_cbranch_scc1 K1_WST")
    A("  s_cmp_lt_u32 s2, 64")
    A("  s_cbranch_scc1 K1_FIN")
    A("  s_cmp_ge_u32 s2, 80")
    A("  s_cbranch_scc1 K1_FIN")
    A(f"  s_mov_b32 s37, {WS_LUT}")
    A("  buffer_store_short v61, v60, s[24:27], s37 offen")
    A("  s_branch K1_FIN")
    A("K1_WST:")
    A("  s_cmp_ge_u32 s2, 20")
    A("  s_cbranch_scc1 K1_NOSC")
    for j in range(8):
        A(f"  v_lshlrev_b32 v{62+j}, 16, v{62+j}")
        A(f"  v_mul_f32 v{62+j}, 0x1c800000, v{62+j}")
        A(f"  v_lshrrev_b32 v{62+j}, 16, v{62+j}")
    A("K1_NOSC:")
    for p in range(4):
        A(f"  v_lshl_or_b32 v{72+p}, v{63+2*p}, 16, v{62+2*p}")
    A("  v_and_b32 v61, 63, v0")
    A("  v_lshlrev_b32 v61, 4, v61")
    A("  s_lshl_b32 s48, s2, 10")
    A(f"  s_add_u32 s48, s48, {WS_WF}")
    A("  buffer_store_dwordx4 v[72:75], v61, s[24:27], s48 offen")
    A("K1_FIN:")
    kstamp_store()
    A("K1_END:")
    A("  s_endpgm")

V_HH16, V_HB, V_OHW, V_OHR, V_UR, V_OHA = 1, 2, 3, 4, 5, 6
ENT = [240, 242]
V_LG, V_CK = 7, 8
V_GP, V_SR, V_SW = 228, 232, 236
DF = [[252, 253, 254], [9, 10, 11]]
V_W9 = 12
V_WX0, V_WX1 = 13, 15
V_W = 16
V_W8 = 80
V_PA = 88
V_D2 = 92
V_ZERO = 93
V_ACC = 96
V_D1 = 128
V_MP = 160
V_T = 176
V_H = 192
HS = [208, 208]
EA = [224, 244]
V_PS, V_PD = 248, 250
V_LA = 255
V_PB = 0
V_TMP = 248
V_E, V_HALF = 246, 247

S_H, S_POS, S_EA, S_WS, S_OUT, S_WXS = 16, 20, 24, 28, 32, 36
S_NB, S_T, S_WIN, S_N, S_NT, S_TC = 40, 41, 42, 43, 44, 45
S_NL2E, S_ONE2 = 46, 48
S_BASE, S_PERM, S_G = 50, 51, 52
S_HIM, S_B1M, S_B0M = 54, 56, 58
S_MASKHI = 60
S_UM = 68
S_C128, S_C144, S_C80, S_P4S, S_P4D = 88, 89, 90, 91, 92
S_M0 = 93
SLOW = []
S_NXB, S_QS, S_PL = 98, 99, 100
PRIO = int(os.environ.get("PRIO", "1"))
def prio_check(tag):
    if not PRIO:
        return
    A(f"  s_cmp_ge_u32 s{S_TC}, s{S_NXB}")
    A(f"  s_cbranch_scc1 K2_PR{tag}")
    A(f"K2_PB{tag}:")
    SLOW.extend([f"K2_PR{tag}:",
                 f"  s_add_u32 s{S_NXB}, s{S_NXB}, s{S_QS}",
                 f"  s_add_u32 s{S_PL}, s{S_PL}, 1",
                 "  s_setprio 2",
                 f"  s_cmp_eq_u32 s{S_PL}, 1",
                 f"  s_cbranch_scc1 K2_PB{tag}",
                 "  s_setprio 1",
                 f"  s_cmp_eq_u32 s{S_PL}, 2",
                 f"  s_cbranch_scc1 K2_PB{tag}",
                 "  s_setprio 0",
                 f"  s_branch K2_PB{tag}"])

def silu_pairs(base, npairs, post):
    for i0 in range(0, npairs, 2):
        idx = [i0, i0 + 1]
        tp = {i0: V_TMP, i0 + 1: V_TMP + 4}
        for i in idx:
            r = base + 2 * i
            A(f"  v_cvt_pk_bf16_f32 v{tp[i]}, v{r}, v{r+1}")
        for i in idx:
            r = base + 2 * i
            A(f"  v_lshlrev_b32 v{r}, 16, v{tp[i]}")
            A(f"  v_and_b32 v{r+1}, s{S_MASKHI}, v{tp[i]}")
        for i in idx:
            r = base + 2 * i
            A(f"  v_pk_mul_f32 {vr(tp[i]+2,2)}, {vr(r,2)}, {sr(S_NL2E,2)}")
        for i in idx:
            A(f"  v_exp_f32 v{tp[i]+2}, v{tp[i]+2}")
            A(f"  v_exp_f32 v{tp[i]+3}, v{tp[i]+3}")
        A("  s_nop 0")
        for i in idx:
            A(f"  v_pk_add_f32 {vr(tp[i]+2,2)}, {vr(tp[i]+2,2)}, {sr(S_ONE2,2)}")
        for i in idx:
            A(f"  v_rcp_f32 v{tp[i]+2}, v{tp[i]+2}")
            A(f"  v_rcp_f32 v{tp[i]+3}, v{tp[i]+3}")
        A("  s_nop 0")
        for i in idx:
            r = base + 2 * i
            A(f"  v_pk_mul_f32 {vr(r,2)}, {vr(r,2)}, {vr(tp[i]+2,2)}")
        for i in idx:
            post(i, base + 2 * i)

def silu_from_packed(p, r, t):
    L = []
    L.append(f"  v_lshlrev_b32 v{r}, 16, v{p}")
    L.append(f"  v_and_b32 v{r+1}, s{S_MASKHI}, v{p}")
    for q in (r, r + 1):
        L.append(f"  v_mul_f32 v{q}, 0x62800000, v{q}")
        L.append(f"  v_mul_f32 v{t}, s{S_NL2E}, v{q}")
        L.append(f"  v_exp_f32 v{t}, v{t}")
        L.append("  s_nop 0")
        L.append(f"  v_add_f32 v{t}, 1.0, v{t}")
        L.append(f"  v_rcp_f32 v{t}, v{t}")
        L.append("  s_nop 0")
        L.append(f"  v_mul_f32 v{q}, v{q}, v{t}")
    L.append(f"  v_cvt_pk_bf16_f32 v{t}, v{r}, v{r+1}")
    L.append(f"  v_lshlrev_b32 v{r}, 16, v{t}")
    L.append(f"  v_and_b32 v{r+1}, s{S_MASKHI}, v{t}")
    return L


def front_a(nt, chk):
    D = V_D1 + 16 * nt
    P = V_MP + 8 * nt
    L = []
    for i in range(8):
        L.append(f"  v_cvt_pk_bf16_f32 v{P+i}, v{D+2*i}, v{D+2*i+1}")
    L.append(f"  v_or3_b32 v{chk}, v{P}, v{P+1}, v{P+2}")
    L.append(f"  v_or3_b32 v{chk}, v{chk}, v{P+3}, v{P+4}")
    L.append(f"  v_or3_b32 v{chk}, v{chk}, v{P+5}, v{P+6}")
    L.append(f"  v_or_b32 v{chk}, v{chk}, v{P+7}")
    L.append(f"  v_and_b32 v{chk}, 0x60006000, v{chk}")
    L.append(f"  v_cmp_ne_u32 vcc, 0, v{chk}")
    return L

def lut_pair(nt, i):
    D = V_D1 + 16 * nt
    P = V_MP + 8 * nt
    return [f"  v_add_u32_sdwa v{D+2*i}, v{P+i}, v{P+i} dst_sel:DWORD dst_unused:UNUSED_PAD src0_sel:WORD_0 src1_sel:WORD_0",
            f"  v_add_u32_sdwa v{D+2*i+1}, v{P+i}, v{P+i} dst_sel:DWORD dst_unused:UNUSED_PAD src0_sel:WORD_1 src1_sel:WORD_1",
            f"  ds_read_u16_d16_hi v{D+2*i}, v{D+2*i}",
            f"  ds_read_u16_d16_hi v{D+2*i+1}, v{D+2*i+1}"]

def slow_branch(nt, tag, tmp):
    D = V_D1 + 16 * nt
    P = V_MP + 8 * nt
    S = [f"K2_SLOW{tag}:", "  s_waitcnt lgkmcnt(0)"]
    for i in range(8):
        S += silu_from_packed(P + i, D + 2 * i, tmp)
    S.append("  s_nop 1")
    S.append(f"  s_branch K2_BACK{tag}")
    SLOW.extend(S)
    return [f"  s_cbranch_vccnz K2_SLOW{tag}", f"K2_BACK{tag}:"]

def back(nt, half):
    D = V_D1 + 16 * nt
    P = V_MP + 8 * nt
    L = []
    for i in range(4 * half, 4 * half + 4):
        for k in range(2):
            r = 2 * i + k
            if nt == 0:
                L.append(f"  v_mul_f32 v{V_T+r}, v{D+r}, v{V_WX0}")
            else:
                L.append(f"  v_fmac_f32 v{V_T+r}, v{D+r}, v{V_WX1}")
        L.append(f"  v_perm_b32 v{P+i}, v{D+2*i+1}, v{D+2*i}, s{S_PERM}")
    return L

def pos_math(df):
    t = V_T
    L = []
    L.append(f"  v_lshlrev_b32 v{t}, 16, v{V_PS}")
    L.append(f"  v_and_b32 v{t+1}, s{S_MASKHI}, v{V_PS}")
    L.append(f"  v_lshlrev_b32 v{t+2}, 16, v{V_PS+1}")
    L.append(f"  v_lshlrev_b32 v{t+3}, 16, v{V_PD}")
    L.append(f"  v_and_b32 v{t+4}, s{S_MASKHI}, v{V_PD}")
    L.append(f"  v_lshlrev_b32 v{t+5}, 16, v{V_PD+1}")
    for c in range(3):
        L.append(f"  v_sub_f32 v{t+c}, v{t+3+c}, v{t+c}")
    L.append(f"  v_cvt_pk_bf16_f32 v{t+3}, v{t}, v{t+1}")
    L.append(f"  v_cvt_pk_bf16_f32 v{t+4}, v{t+2}, v{t+2}")
    L.append(f"  v_lshlrev_b32 v{df[0]}, 16, v{t+3}")
    L.append(f"  v_and_b32 v{df[1]}, s{S_MASKHI}, v{t+3}")
    L.append(f"  v_lshlrev_b32 v{df[2]}, 16, v{t+4}")
    for c in range(3):
        L.append(f"  v_mul_f32 v{t+c}, v{df[c]}, v{df[c]}")
    L.append(f"  v_cvt_pk_bf16_f32 v{t+3}, v{t}, v{t+1}")
    L.append(f"  v_cvt_pk_bf16_f32 v{t+4}, v{t+2}, v{t+2}")
    L.append(f"  v_lshlrev_b32 v{t}, 16, v{t+3}")
    L.append(f"  v_and_b32 v{t+1}, s{S_MASKHI}, v{t+3}")
    L.append(f"  v_lshlrev_b32 v{t+2}, 16, v{t+4}")
    L.append(f"  v_add_f32 v{t}, v{t}, v{t+1}")
    L.append(f"  v_add_f32 v{t}, v{t}, v{t+2}")
    L.append(f"  v_cvt_pk_bf16_f32 v{t}, v{t}, v{V_ZERO}")
    L.append(f"  v_cndmask_b32_e64 v{V_D2}, v{V_ZERO}, v{t}, {sr(S_UM,2)}")
    return L

def pos_loads(ent):
    t = V_T + 6
    return [f"  v_mad_u32_u16 v{t}, v{ent}, 8, 0",
            f"  s_mov_b64 exec, {sr(S_UM,2)}",
            f"  buffer_load_dwordx2 {vr(V_PS,2)}, v{t}, {sr(S_WS,4)}, s{S_P4S} offen",
            f"  s_mov_b64 exec, -1"]

def pd_read(ent):
    return [f"  v_mad_u32_u16 v{V_PD}, v{ent}, s{S_C144}, v{V_PB} op_sel:[1,0,0,0]",
            f"  ds_read_b64 {vr(V_PD,2)}, v{V_PD} offset:{L_HROW+128}"]

def gather_direct(b):
    L = [f"  v_mad_u32_u16 v{HS[b]+12}, v{ENT[b]}, s{S_C128}, v{V_HH16}",
         f"  v_lshl_add_u32 v{EA[b]}, v{ENT[b]+1}, 5, v{V_HH16}"]
    for s in range(4):
        L.append(f"  buffer_load_dwordx4 {vr(HS[b]+4*s,4)}, v{HS[b]+12}, {sr(S_H,4)}, 0 offen offset:{32*s}")
    L.append(f"  buffer_load_dwordx4 {vr(EA[b],4)}, v{EA[b]}, {sr(S_EA,4)}, 0 offen")
    return L

def gather_loads(b):
    L = []
    for i in range(4):
        L.append(f"  s_mov_b32 m0, s{S_M0+i}")
        L.append(f"  v_mad_u32_u16 v{V_SW+i}, v{V_SW+i}, s{S_C128}, v{V_GP+i}")
        L.append(f"  buffer_load_dwordx4 v{V_SW+i}, {sr(S_H,4)}, 0 offen lds")
    L.append(f"  v_lshl_add_u32 v{EA[b]}, v{ENT[b]+1}, 5, v{V_HH16}")
    L.append(f"  buffer_load_dwordx4 {vr(EA[b],4)}, v{EA[b]}, {sr(S_EA,4)}, 0 offen")
    return L

def s_reads():
    return [f"  ds_read_b128 {vr(HS[0]+4*s,4)}, v{V_SR+s}" for s in range(4)]

def list_reads(b, off=0):
    return [f"  ds_read2st64_b32 {vr(ENT[b],2)}, v{V_LA} offset0:0 offset1:10",
            f"  ds_read_b128 {vr(V_SW,4)}, v{V_LG}",
            f"  v_add_u32 v{V_LA}, 128, v{V_LA}",
            f"  v_add_u32 v{V_LG}, 128, v{V_LG}"]

def h_reads(ent):
    L = [f"  v_mad_u32_u16 v{V_H+12}, v{ent}, s{S_C144}, v{V_HB} op_sel:[1,0,0,0]"]
    for s in range(4):
        L.append(f"  ds_read_b128 {vr(V_H+4*s,4)}, v{V_H+12} offset:{L_HROW+32*s}")
    return L

def oh_set(ent, tmp):
    return [f"  v_mad_u32_u16 v{V_OHA}, v{ent}, s{S_C80}, v{V_OHW} op_sel:[1,0,0,0]",
            f"  v_mov_b32 v{tmp}, 0x3f80",
            f"  ds_write_b16 v{V_OHA}, v{tmp}"]

def mchain(b, nt, order):
    L = []
    d = vr(V_D1 + 16 * nt, 16)
    for q, k in enumerate(order):
        if k[0] == "H":
            a, w = V_H + 4 * int(k[1]), V_W + 4 * (2 * int(k[1]) + nt)
        elif k[0] == "S":
            a, w = HS[b] + 4 * int(k[1]), V_W + 4 * (2 * (4 + int(k[1])) + nt)
        elif k == "E":
            a, w = EA[b], V_W8 + 4 * nt
        else:
            a, w = V_D2, V_W9 + 2 * nt
        c = "0" if q == 0 else d
        L.append(f"  v_mfma_f32_32x32x16_bf16 {d}, {vr(a,4)}, {vr(w,4)}, {c}")
    return L

def u_mfmas():
    L = []
    for q in range(4):
        L.append(f"  v_mfma_f32_4x4x4_16b_bf16 {vr(V_PA,4)}, {vr(V_T+8+2*q,2)}, {vr(V_D1+16+2*q,2)}, {vr(V_PA,4)}")
    return L

def weave(v, m, pos):
    assert len(m) == len(pos)
    L = []
    j = 0
    for i in range(len(v) + 1):
        while j < len(m) and pos[j] == i:
            L.append(m[j])
            j += 1
        if i < len(v):
            L.append(v[i])
    assert j == len(m)
    return L

def phase_x(b, tag):
    M = mchain(b, 1, ["D", "H0", "H1", "H2", "H3", "E", "S0", "S1", "S2", "S3"])
    U = u_mfmas()
    L = list_reads(b)
    L += pd_read(ENT[b ^ 1])
    L += front_a(0, V_T)
    L.append("  s_waitcnt lgkmcnt(3)")
    for i in range(8):
        if i < 4:
            L.append(U[i])
        elif i in (4, 6):
            L.append(M[(i - 4) // 2])
        L += lut_pair(0, i)
    L.append(M[2])
    L += slow_branch(0, tag, V_T)
    L.append("  s_waitcnt vmcnt(5) lgkmcnt(15)")
    L += weave(pos_math(DF[b ^ 1]), M[3:6], [6, 14, 22])
    L += pos_loads(ENT[b])
    L.append(M[6])
    L.append("  s_waitcnt lgkmcnt(8)")
    L += weave(back(0, 0), M[7:8], [6])
    L.append("  s_waitcnt lgkmcnt(0)")
    L += weave(back(0, 1), M[8:10], [1, 8])
    for l in L:
        A(l)

def phase_y(b, tag):
    M = mchain(b ^ 1, 0, ["E", "D", "H0", "H1", "H2", "H3", "S0", "S1", "S2", "S3"])
    L = h_reads(ENT[b ^ 1])
    L += front_a(1, V_CK)
    L.append("  s_waitcnt vmcnt(1)")
    L += s_reads()
    for i in range(8):
        if i == 4:
            L.append("  s_waitcnt lgkmcnt(12)")
        if i % 2 == 0:
            L.append(M[i // 2])
        L += lut_pair(1, i)
    L.append(M[4])
    L += slow_branch(1, tag, V_CK)
    L.append("  s_waitcnt lgkmcnt(15)")
    L += gather_loads(b)
    L.append(M[5])
    L.append("  s_waitcnt lgkmcnt(8)")
    L += weave(back(1, 0), M[6:7], [8])
    L.append("  s_waitcnt lgkmcnt(0)")
    L += weave(back(1, 1), M[7:9], [4, 12])
    OH = V_D1 + 16
    L.append(f"  ds_read_b128 {vr(OH,4)}, v{V_OHR}")
    L.append(f"  ds_read_b128 {vr(OH+4,4)}, v{V_OHR} offset:32")
    L.append(f"  ds_write_b16 v{V_OHA}, v{V_ZERO}")
    L += oh_set(ENT[b ^ 1], OH + 8)
    L.append(M[9])
    t = V_T
    for r in range(8):
        L.append(f"  v_permlane16_swap_b32 v{t+r}, v{t+r+8}")
    for r in range(8):
        L.append(f"  v_add_f32 v{t+r}, v{t+r}, v{t+r+8}")
    G = []
    for tt in range(2):
        for mt in range(2):
            d = vr(V_ACC + 16 * mt, 16)
            G.append(f"  v_mfma_f32_32x32x16_bf16 {d}, {vr(V_MP+8*mt+4*tt,4)}, {vr(OH+4*tt,4)}, {d}")
    L.append("  s_waitcnt lgkmcnt(2)")
    L.append(G[0])
    for r in range(4):
        L.append(f"  v_add_f32_dpp v{t+r}, v{t+r}, v{t+r} row_mirror row_mask:0xf bank_mask:0x3")
    for r in range(4):
        L.append(f"  v_add_f32_dpp v{t+r}, v{t+r+4}, v{t+r+4} row_mirror row_mask:0xf bank_mask:0xc")
    L.append(G[1])
    for r in range(2):
        L.append(f"  v_cndmask_b32_e64 v{t+4+r}, v{t+r}, v{t+r+2}, {sr(S_B1M,2)}")
        L.append(f"  v_cndmask_b32_e64 v{t+6+r}, v{t+r+2}, v{t+r}, {sr(S_B1M,2)}")
    L.append(G[2])
    for r in range(2):
        L.append(f"  v_add_f32_dpp v{t+r}, v{t+6+r}, v{t+4+r} quad_perm:[2,3,0,1] row_mask:0xf bank_mask:0xf")
    L.append(f"  v_cndmask_b32_e64 v{t+4}, v{t}, v{t+1}, {sr(S_B0M,2)}")
    L.append(f"  v_cndmask_b32_e64 v{t+6}, v{t+1}, v{t}, {sr(S_B0M,2)}")
    L.append(G[3])
    L.append(f"  v_add_f32_dpp v{t}, v{t+6}, v{t+4} quad_perm:[1,0,3,2] row_mask:0xf bank_mask:0xf")
    L.append(f"  v_add_f32_dpp v{t+1}, v{t}, v{t} row_shl:4 row_mask:0x3 bank_mask:0x5")
    L.append(f"  v_add_f32_dpp v{t+1}, v{t}, v{t} row_shr:4 row_mask:0xc bank_mask:0xa")
    L.append(f"  v_cvt_pk_bf16_f32 v{t+1}, v{t+1}, v{t+1}")
    L.append(f"  v_lshlrev_b32 v{t+1}, 16, v{t+1}")
    for c in range(3):
        L.append(f"  v_mul_f32 v{t+2+c}, v{DF[b][c]}, v{t+1}")
    L.append(f"  v_cvt_pk_bf16_f32 v{t+5}, v{t+2}, v{t+3}")
    L.append(f"  v_cvt_pk_bf16_f32 v{t+6}, v{t+4}, v{t+4}")
    L.append(f"  s_mov_b64 exec, {sr(S_UM,2)}")
    L.append(f"  ds_write_b16 v{V_OHW}, v{t+5} offset:{L_U-L_OH}")
    L.append(f"  ds_write_b16_d16_hi v{V_OHW}, v{t+5} offset:{L_U-L_OH+64}")
    L.append(f"  ds_write_b16 v{V_OHW}, v{t+6} offset:{L_U-L_OH+128}")
    L.append("  s_mov_b64 exec, -1")
    L.append(f"  ds_read_b128 {vr(t+8,4)}, v{V_UR}")
    L.append(f"  ds_read_b128 {vr(t+12,4)}, v{V_UR} offset:32")
    for l in L:
        A(l)

def table_loads():
    A("  v_lshlrev_b32 v249, 5, v0")
    A(f"  s_lshr_b32 s61, s{S_G}, 3")
    A("  s_lshl_b32 s61, s61, 13")
    A(f"  s_and_b32 s62, s{S_G}, 7")
    A("  s_lshl_b32 s62, s62, 2")
    A("  s_add_u32 s62, s62, s61")
    A(f"  s_add_u32 s62, s62, {WS_TAB}")
    A("  s_add_u32 s63, s62, 4096")
    for j in range(4):
        A(f"  buffer_load_dword v{128+j}, v249, {sr(S_WS,4)}, s{62+(j>>1)} offen offset:{2048*(j&1)}")

def table_scan():
    for j in range(4):
        A(f"  v_lshrrev_b32 v{152+j}, 16, v{128+j}")
        A(f"  v_and_b32 v{160+j}, 0xffff, v{128+j}")
    A(f"  v_mul_u32_u24 v249, {CHS}, v0")
    for j in range(4):
        A(f"  v_add_u32 v{160+j}, v{160+j}, v249")
        if j:
            A(f"  v_add_u32 v{160+j}, {64*CHS*j}, v{160+j}")
    A("  v_add_u32 v164, v152, v153")
    A("  v_add_u32 v165, v154, v155")
    A("  v_add_u32 v164, v164, v165")
    A("  v_mov_b32 v165, v164")
    wave_scan(165)
    A(f"  v_readlane_b32 s{S_T}, v165, 63")
    A("  v_sub_u32 v156, v165, v164")
    A("  v_add_u32 v157, v156, v152")
    A("  v_add_u32 v158, v157, v153")
    A("  v_add_u32 v159, v158, v154")

def k_main():
    name = "gather_scatter__cheap_equivariant_egnn__graph_kernel"
    A(f".globl {name}")
    A(".p2align 8")
    A(f".type {name},@function")
    A(f"{name}:")
    A("  s_cmp_ge_u32 s2, 256")
    A("  s_cbranch_scc1 K2_END")
    A("  s_and_b32 s3, s2, 7")
    A("  s_lshl_b32 s3, s3, 5")
    A("  s_lshr_b32 s61, s2, 3")
    A("  s_add_u32 s3, s3, s61")
    A(f"  s_cmp_ge_u32 s3, {NWG2}")
    A("  s_cbranch_scc1 K2_END")
    stamp(0, True, 'AP')
    stamp(1, False, 'AP')
    A("  s_load_dwordx4 s[4:7], s[0:1], 0")
    A("  s_load_dwordx2 s[8:9], s[0:1], 16")
    A("  s_load_dwordx2 s[10:11], s[0:1], 48")
    A("  s_load_dwordx2 s[12:13], s[0:1], 64")
    A("  s_load_dwordx2 s[14:15], s[0:1], 80")
    A("  v_lshrrev_b32 v248, 6, v0")
    A("  v_lshlrev_b32 v255, 4, v0")
    A("  v_readfirstlane_b32 s61, v248")
    A("  v_and_b32 v0, 63, v0")
    A("  s_lshl_b32 s3, s3, 3")
    A(f"  s_add_u32 s{S_G}, s3, s61")
    A(f"  s_mul_i32 s{S_NB}, s{S_G}, {GS}")
    A(f"  s_mul_i32 s{S_BASE}, s61, {WA}")
    A(f"  s_add_u32 s{S_BASE}, s{S_BASE}, 16384")
    A("  s_cmp_lt_u32 s61, 3")
    A("  s_cbranch_scc1 K2_B0")
    A(f"  s_add_u32 s{S_BASE}, s{S_BASE}, 16384")
    A("K2_B0:")
    A("  s_lshl_b32 s97, s61, 10")
    for i in range(4):
        A(f"  s_add_u32 s{S_M0+i}, s{S_BASE}, {L_G+1024*i}")
    A(f"  s_mov_b32 s{S_NL2E}, 0xbfb8aa3b")
    A(f"  s_mov_b32 s{S_NL2E+1}, 0xbfb8aa3b")
    A(f"  s_mov_b32 s{S_ONE2}, 1.0")
    A(f"  s_mov_b32 s{S_ONE2+1}, 1.0")
    A(f"  s_mov_b32 s{S_PERM}, 0x07060302")
    A(f"  s_mov_b32 s{S_HIM}, 0")
    A(f"  s_mov_b32 s{S_HIM+1}, -1")
    A(f"  s_mov_b32 s{S_B1M}, 0xcccccccc")
    A(f"  s_mov_b32 s{S_B1M+1}, 0xcccccccc")
    A(f"  s_mov_b32 s{S_B0M}, 0xaaaaaaaa")
    A(f"  s_mov_b32 s{S_B0M+1}, 0xaaaaaaaa")
    A(f"  s_mov_b32 s{S_MASKHI}, 0xffff0000")
    A(f"  s_mov_b32 s{S_UM}, 0x0f0f0f0f")
    A(f"  s_mov_b32 s{S_UM+1}, 0xf0f0f0f0")
    A(f"  s_movk_i32 s{S_C128}, 128")
    A(f"  s_movk_i32 s{S_C144}, {HSTR}")
    A(f"  s_movk_i32 s{S_C80}, {OSTR}")
    A(f"  s_mov_b32 s{S_P4S}, {WS_POS4}")
    A(f"  s_lshl_b32 s{S_P4D}, s{S_NB}, 3")
    A(f"  s_add_u32 s{S_P4D}, s{S_P4D}, {WS_POS4}")
    A("  s_waitcnt lgkmcnt(0)")
    stamp(2, False, 'P')
    srd(S_WS, 14, WS_SIZE)
    table_loads()
    srd(S_H, 4, N * 128)
    srd(S_POS, 6, N * 6)
    srd(S_EA, 8, E * 32)
    srd(S_OUT, 12, N * 128 + N * 6)
    srd(S_WXS, 10, 128)
    A(f"  v_and_b32 v{V_E}, 31, v0")
    A(f"  v_lshrrev_b32 v{V_HALF}, 5, v0")
    A("  v_lshlrev_b32 v250, 4, v0")
    A(f"  s_lshl_b32 s61, s{S_NB}, 7")
    for i in range(4):
        A(f"  buffer_load_dwordx4 {vr(132+4*i,4)}, v250, {sr(S_H,4)}, s61 offen offset:{1024*i}")
    A(f"  v_lshlrev_b32 v251, 1, v{V_E}")
    A(f"  buffer_load_ushort v{V_WX0}, v251, {sr(S_WXS,4)}, 0 offen")
    A(f"  buffer_load_ushort v{V_WX1}, v251, {sr(S_WXS,4)}, 0 offen offset:64")
    A(f"  v_lshlrev_b32 v251, 3, v{V_E}")
    A(f"  buffer_load_dwordx2 v[168:169], v251, {sr(S_WS,4)}, s{S_P4D} offen")
    A("  s_barrier")
    A(f"  s_mov_b32 s61, {WS_LUT}")
    for i in range(4):
        A(f"  s_add_u32 m0, s97, {8192*(i&1) + 65536*(i>>1)}")
        A("  s_nop 0")
        A(f"  buffer_load_dwordx4 v255, {sr(S_WS,4)}, s61 offen lds")
        if i < 3:
            A("  s_add_u32 s61, s61, 8192")
    e = V_E
    A(f"  v_lshlrev_b32 v{V_HH16}, 4, v{V_HALF}")
    A(f"  v_add_u32 v{V_HB}, s{S_BASE}, v{V_HH16}")
    A(f"  v_lshrrev_b32 v248, 4, v{e}")
    A(f"  v_lshlrev_b32 v{V_OHW}, 5, v248")
    A(f"  v_bfe_u32 v248, v{e}, 2, 1")
    A(f"  v_lshl_add_u32 v{V_OHW}, v248, 4, v{V_OHW}")
    A(f"  v_bfe_u32 v248, v{e}, 3, 1")
    A(f"  v_lshl_add_u32 v{V_OHW}, v248, 3, v{V_OHW}")
    A(f"  v_and_b32 v248, 3, v{e}")
    A(f"  v_lshl_add_u32 v{V_OHW}, v248, 1, v{V_OHW}")
    A(f"  v_add_u32 v{V_OHW}, {L_OH}, v{V_OHW}")
    A(f"  v_add_u32 v{V_OHW}, s{S_BASE}, v{V_OHW}")
    A(f"  v_min_u32 v{V_OHR}, 25, v{e}")
    A(f"  v_mul_u32_u24 v{V_OHR}, {OSTR}, v{V_OHR}")
    A(f"  v_add_u32 v{V_OHR}, v{V_OHR}, v{V_HB}")
    A(f"  v_add_u32 v{V_OHR}, {L_OH}, v{V_OHR}")
    A(f"  v_lshl_add_u32 v{V_UR}, v248, 6, v{V_HB}")
    A(f"  v_add_u32 v{V_UR}, {L_U}, v{V_UR}")
    for i in range(1, 4):
        A(f"  v_mov_b32 v{V_D2+i}, 0")
    A("  v_lshrrev_b32 v248, 3, v0")
    A("  v_lshrrev_b32 v249, 4, v0")
    A("  v_xor_b32 v248, v248, v249")
    A("  v_and_b32 v248, 1, v248")
    A("  v_lshlrev_b32 v248, 2, v248")
    A("  v_and_b32 v249, 7, v0")
    A("  v_xor_b32 v248, v248, v249")
    for i in range(4):
        A(f"  v_xor_b32 v{V_GP+i}, {i}, v248")
        A(f"  v_lshlrev_b32 v{V_GP+i}, 4, v{V_GP+i}")
    A(f"  v_lshrrev_b32 v248, 2, v{e}")
    A(f"  v_lshrrev_b32 v249, 3, v{e}")
    A("  v_xor_b32 v249, v248, v249")
    A("  v_and_b32 v249, 1, v249")
    A(f"  v_and_b32 v253, 3, v{e}")
    A("  v_lshl_or_b32 v249, v249, 2, v253")
    A(f"  v_xor_b32 v249, v249, v{V_HALF}")
    A("  v_lshlrev_b32 v248, 7, v248")
    A("  v_lshl_add_u32 v248, v253, 10, v248")
    A(f"  v_add_u32 v248, s{S_BASE}, v248")
    for q in range(4):
        A(f"  v_xor_b32 v{V_SR+q}, {2*q}, v249")
        A(f"  v_lshl_add_u32 v{V_SR+q}, v{V_SR+q}, 4, v248")
    for i in range(4):
        A(f"  v_mov_b32 v{148+i}, 0")
    A(f"  v_add_u32 v252, s{S_BASE}, v250")
    for i in range(2):
        A(f"  ds_write_b128 v252, v[148:151] offset:{L_OH+1024*i}")
    A(f"  v_cmp_gt_u32 vcc, 17, v0")
    A("  s_and_saveexec_b64 s[66:67], vcc")
    A(f"  ds_write_b128 v252, v[148:151] offset:{L_OH+2048}")
    A("  s_mov_b64 exec, s[66:67]")
    A(f"  v_cmp_gt_u32 vcc, 8, v0")
    A("  s_and_saveexec_b64 s[66:67], vcc")
    A(f"  ds_write_b128 v252, v[148:151] offset:{L_HROW+25*HSTR}")
    A("  s_mov_b64 exec, s[66:67]")
    A("  s_waitcnt vmcnt(11)")
    stamp(3, False, 'P')
    table_scan()
    stamp(2)
    A("  v_lshrrev_b32 v249, 3, v0")
    A(f"  v_mul_u32_u24 v249, {HSTR}, v249")
    A("  v_and_b32 v251, 7, v0")
    A("  v_lshl_add_u32 v249, v251, 4, v249")
    A(f"  v_add_u32 v249, s{S_BASE}, v249")
    A("  s_waitcnt vmcnt(7)")
    for i in range(3):
        A(f"  ds_write_b128 v249, {vr(132+4*i,4)} offset:{L_HROW+8*HSTR*i}")
    A(f"  v_cmp_gt_u32 vcc, 8, v0")
    A("  s_and_saveexec_b64 s[66:67], vcc")
    A(f"  ds_write_b128 v249, {vr(144,4)} offset:{L_HROW+8*HSTR*3}")
    A("  s_mov_b64 exec, s[66:67]")
    A(f"  v_mul_u32_u24 v249, {HSTR}, v0")
    A(f"  v_add_u32 v249, s{S_BASE}, v249")
    A("  s_waitcnt vmcnt(4)")
    A(f"  v_cmp_gt_u32 vcc, {GS}, v0")
    A("  s_and_saveexec_b64 s[66:67], vcc")
    A(f"  ds_write_b64 v249, v[168:169] offset:{L_HROW+128}")
    A("  s_mov_b64 exec, s[66:67]")
    A(f"  v_lshlrev_b32 v{V_WX0}, 16, v{V_WX0}")
    A(f"  v_lshlrev_b32 v{V_WX1}, 16, v{V_WX1}")
    A(f"  s_mov_b32 s{S_WIN}, 0")
    A("  s_branch K2_R0")
    A("K2_ROUND:")
    table_loads()
    A("  s_waitcnt vmcnt(0)")
    table_scan()
    A("K2_R0:")
    A(f"  s_sub_u32 s{S_N}, s{S_T}, s{S_WIN}")
    A(f"  s_min_u32 s{S_N}, s{S_N}, {CAP}")
    A(f"  s_add_u32 s61, s{S_WIN}, {CAP}")
    for j in range(4):
        A(f"  s_cmp_lg_u32 s{S_WIN}, 0")
        A(f"  s_cbranch_scc1 K2_NOW{j}")
        A(f"  s_mov_b32 s62, {WS_WF + 5120*j}")
        for q in range(5):
            f = 5 * j + q
            if q == 4:
                A("  s_add_u32 s62, s62, 4096")
            if f < 18:
                dstr = V_W + 4 * f if f < 16 else V_W8 + 4 * (f - 16)
                A(f"  buffer_load_dwordx4 {vr(dstr,4)}, v250, {sr(S_WS,4)}, s62 offen offset:{1024*(q%4)}")
            else:
                A(f"  buffer_load_dword v{V_W9+2*(f-18)}, v250, {sr(S_WS,4)}, s62 offen offset:{1024*(q%4)}")
        A(f"K2_NOW{j}:")
        A(f"  v_max_u32 v164, s{S_WIN}, v{156+j}")
        A(f"  v_add_u32 v165, v{156+j}, v{152+j}")
        A(f"  v_min_u32 v165, s61, v165")
        A(f"  v_sub_u32 v166, v164, v{156+j}")
        A(f"  v_add_u32 v166, v166, v{160+j}")
        A(f"  v_subrev_u32 v167, s{S_WIN}, v164")
        A(f"  v_lshl_add_u32 v167, v167, 2, s{S_BASE}")
        A(f"K2_EXP{j}:")
        A("  v_cmp_lt_u32 vcc, v164, v165")
        A(f"  s_cbranch_vccz K2_EXPD{j}")
        A("  s_mov_b64 exec, vcc")
        A(f"  ds_write_b32 v167, v166 offset:{L_LIST}")
        A("  v_add_u32 v164, 1, v164")
        A("  v_add_u32 v166, 1, v166")
        A("  v_add_u32 v167, 4, v167")
        A(f"  s_branch K2_EXP{j}")
        A(f"K2_EXPD{j}:")
        A("  s_mov_b64 exec, -1")
    stamp(3)
    stamp(4, False, 'P')
    A(f"  v_lshl_add_u32 v249, v0, 2, s{S_BASE}")
    A(f"  v_add_u32 v249, {L_LIST}, v249")
    for i in range(CAP // 64):
        A(f"  ds_read_b32 v{164+i}, v249 offset:{256*i}")
    A("  s_waitcnt lgkmcnt(0)")
    for i in range(CAP // 64):
        A(f"  v_lshlrev_b32 v{164+i}, 3, v{164+i}")
        A(f"  buffer_load_dwordx2 {vr(176+2*i,2)}, v{164+i}, {sr(S_WS,4)}, 0 offen")
    A(f"  s_cmp_lg_u32 s{S_WIN}, 0")
    A("  s_cbranch_scc1 K2_R1")
    A("  s_waitcnt vmcnt(28)")
    for i in range(32):
        A(f"  v_mov_b32 v{V_ACC+i}, 0")
    for i in range(4):
        A(f"  v_mov_b32 v{V_PA+i}, 0")
    A("  s_barrier")
    if os.environ.get("EXP_HALF"):
        A(f"  s_and_b32 s61, s{S_G}, 7")
        A("  s_cmp_ge_u32 s61, 4")
        A("  s_cbranch_scc1 K2_END")
    A("K2_R1:")
    for i in range(CAP // 64):
        A(f"  s_waitcnt vmcnt({CAP//64-1-i})")
        if int(os.environ.get("EXP_NOMEM", "0")) & 1:
            A(f"  v_and_b32 v{176+2*i}, 1023, v{176+2*i}")
        if int(os.environ.get("EXP_NOMEM", "0")) & 2:
            A(f"  v_and_b32 v{177+2*i}, 0xffff03ff, v{177+2*i}")
        A(f"  ds_write2st64_b32 v249, v{177+2*i}, v{176+2*i} offset0:{i} offset1:{10+i}")
    A(f"  s_cmp_eq_u32 s{S_T}, 0")
    A("  s_cbranch_scc1 K2_EPI")
    A(f"  s_lshl_b32 s61, s{S_N}, 2")
    A("  v_add_u32 v249, s61, v249")
    A("  v_mov_b32 v164, 0")
    A(f"  v_mov_b32 v165, {GS << 16}")
    A(f"  ds_write2st64_b32 v249, v165, v164 offset0:0 offset1:10")
    A("  s_mov_b32 exec_hi, 0")
    A(f"  ds_write2st64_b32 v249, v165, v164 offset0:1 offset1:11")
    A("  s_mov_b32 exec_hi, -1")
    A(f"  s_add_u32 s{S_NT}, s{S_N}, 31")
    A(f"  s_lshr_b32 s{S_NT}, s{S_NT}, 5")
    A(f"  s_mov_b32 s{S_TC}, 0")
    if PRIO:
        A(f"  s_add_u32 s{S_QS}, s{S_NT}, 3")
        A(f"  s_lshr_b32 s{S_QS}, s{S_QS}, 2")
        A(f"  s_mov_b32 s{S_NXB}, s{S_QS}")
        A(f"  s_mov_b32 s{S_PL}, 0")
        A("  s_setprio 3")
    stamp(4)
    stamp(5, False, 'P')
    with seg() as PRO:
        A(f"  v_and_b32 v{V_LA}, 31, v0")
        A(f"  v_lshl_add_u32 v{V_LA}, v{V_LA}, 2, s{S_BASE}")
        A(f"  v_add_u32 v{V_LA}, {L_LIST}, v{V_LA}")
        A(f"  v_lshrrev_b32 v{V_LG}, 3, v0")
        A(f"  v_lshl_add_u32 v{V_LG}, v{V_LG}, 4, s{S_BASE}")
        A(f"  v_add_u32 v{V_LG}, {L_LIST+128}, v{V_LG}")
        A(f"  ds_read2st64_b32 {vr(ENT[0],2)}, v{V_LA} offset0:0 offset1:10")
        A(f"  v_add_u32 v{V_LA}, 128, v{V_LA}")
        for l in list_reads(1):
            A(l)
        for i in range(8):
            A(f"  v_mov_b32 v{V_T+8+i}, 0")
            A(f"  v_mov_b32 v{V_D1+16+i}, 0")
        A(f"  v_mov_b32 v{V_PB}, s{S_BASE}")
        A("  s_waitcnt lgkmcnt(2)")
        for l in pos_loads(ENT[0]) + gather_direct(0) + pd_read(ENT[0]) + h_reads(ENT[0]) + oh_set(ENT[0], V_T):
            A(l)
        A("  s_waitcnt vmcnt(5) lgkmcnt(5)")
        for l in pos_math(DF[0]):
            A(l)
        for l in pos_loads(ENT[1]) + gather_loads(1):
            A(l)
        A("  s_waitcnt vmcnt(6) lgkmcnt(0)")
        for l in mchain(0, 0, ["S0", "S1", "S2", "S3", "E", "D", "H0", "H1", "H2", "H3"]):
            A(l)
        A("  s_nop 7")
        A("  s_nop 3")
        stamp(6, False, 'P')
    with seg() as X0:
        phase_x(0, "0a")
    with seg() as Y0:
        phase_y(0, "0b")
        A(f"  s_add_u32 s{S_TC}, s{S_TC}, 1")
        prio_check("a")
        A(f"  s_cmp_ge_u32 s{S_TC}, s{S_NT}")
        A("  s_cbranch_scc1 K2_LOOPD")
    with seg() as X1:
        phase_x(1, "1a")
    with seg() as Y1:
        phase_y(1, "1b")
        A(f"  s_add_u32 s{S_TC}, s{S_TC}, 1")
        prio_check("b")
        A(f"  s_cmp_lt_u32 s{S_TC}, s{S_NT}")
        A("  s_cbranch_scc1 K2_LOOP")
    with seg() as TAIL:
        A("  s_waitcnt lgkmcnt(0)")
        for l in u_mfmas():
            A(l)
        A(f"  ds_write_b16 v{V_OHA}, v{V_ZERO}")
        A("  v_mbcnt_lo_u32_b32 v0, -1, 0")
        A("  v_mbcnt_hi_u32_b32 v0, -1, v0")
        A("  s_waitcnt vmcnt(0)")
        A(f"  s_add_u32 s{S_WIN}, s{S_WIN}, {CAP}")
        A(f"  s_cmp_lt_u32 s{S_WIN}, s{S_T}")
        A("  s_cbranch_scc1 K2_ROUND")
    with seg() as EPI:
        A("K2_EPI:")
        A("  s_waitcnt vmcnt(0)")
        stamp(5)
        A("  v_lshlrev_b32 v250, 4, v0")
        A(f"  s_mov_b32 s61, {WS_WF+20*1024}")
        for f in range(16):
            if f and f % 4 == 0:
                A("  s_add_u32 s61, s61, 4096")
            A(f"  buffer_load_dwordx4 {vr(V_W+4*f,4)}, v250, {sr(S_WS,4)}, s61 offen offset:{1024*(f%4)}")
        A(f"  v_and_b32 v{e}, 31, v0")
        A(f"  v_min_u32 v249, 25, v{e}")
        A(f"  v_mul_u32_u24 v249, {HSTR}, v249")
        A(f"  v_add_u32 v251, v249, v{V_HB}")
        for s in range(4):
            A(f"  ds_read_b128 {vr(V_T+4*s,4)}, v251 offset:{L_HROW+32*s}")
        A(f"  v_lshrrev_b32 v252, 1, v{V_HH16}")
        A("  v_add_u32 v252, v249, v252")
        A(f"  v_add_u32 v252, s{S_BASE}, v252")
        for ot in range(2):
            for q in range(4):
                A(f"  ds_read_b64 {vr(192+8*ot+2*q,2)}, v252 offset:{L_HROW+64*ot+16*q}")
        for c in range(3):
            A(f"  v_mov_b32 v{218+c}, v{V_PA+c}")
        for c in range(3):
            A(f"  v_permlane32_swap_b32 v{218+c}, v{V_PA+c}")
        for c in range(3):
            A(f"  v_add_f32 v{218+c}, v{218+c}, v{V_PA+c}")
        A(f"  v_add_u32 v230, s{S_NB}, v{e}")
        A("  v_mul_u32_u24 v231, 6, v230")
        for c in range(3):
            A(f"  buffer_load_ushort v{222+c}, v231, {sr(S_POS,4)}, 0 offen offset:{2*c}")
        for mt in range(2):
            for i in range(8):
                A(f"  v_cvt_pk_bf16_f32 v{V_MP+8*mt+i}, v{V_ACC+16*mt+2*i}, v{V_ACC+16*mt+2*i+1}")
        A("  s_waitcnt vmcnt(3) lgkmcnt(0)")
        bops = [vr(V_T + 4 * s, 4) for s in range(4)] + [vr(V_MP + 4 * s, 4) for s in range(4)]
        for ks in range(8):
            for ot in range(2):
                d = vr(V_D1 + 16 * ot, 16)
                c = "0" if ks == 0 else d
                A(f"  v_mfma_f32_32x32x16_bf16 {d}, {vr(V_W+4*(2*ks+ot),4)}, {bops[ks]}, {c}")
        A("  s_nop 7")
        A("  s_nop 7")
        def post2(i, r):
            A(f"  v_cvt_pk_bf16_f32 v{V_T}, v{r}, v{r+1}")
            A(f"  v_lshlrev_b32 v{r}, 16, v{V_T}")
            A(f"  v_and_b32 v{r+1}, s{S_MASKHI}, v{V_T}")
            A(f"  v_lshlrev_b32 v{V_T+2}, 16, v{192+i}")
            A(f"  v_and_b32 v{V_T+3}, s{S_MASKHI}, v{192+i}")
            A(f"  v_pk_add_f32 {vr(r,2)}, {vr(r,2)}, {vr(V_T+2,2)}")
            A(f"  v_cvt_pk_bf16_f32 v{V_MP+i}, v{r}, v{r+1}")
        silu_pairs(V_D1, 16, post2)
        A(f"  v_cmp_gt_u32 vcc, {GS}, v{e}")
        A("  s_and_saveexec_b64 s[66:67], vcc")
        A(f"  v_lshrrev_b32 v252, 1, v{V_HH16}")
        A("  v_lshl_add_u32 v252, v230, 7, v252")
        for ot in range(2):
            for q in range(4):
                A(f"  buffer_store_dwordx2 {vr(V_MP+8*ot+2*q,2)}, v252, {sr(S_OUT,4)}, 0 offen offset:{64*ot+16*q}")
        A("  s_waitcnt vmcnt(8)")
        A(f"  v_cvt_pk_bf16_f32 v226, v218, v219")
        A(f"  v_cvt_pk_bf16_f32 v227, v220, v220")
        A(f"  v_lshlrev_b32 v218, 16, v226")
        A(f"  v_and_b32 v219, s{S_MASKHI}, v226")
        A(f"  v_lshlrev_b32 v220, 16, v227")
        for c in range(3):
            A(f"  v_lshlrev_b32 v{222+c}, 16, v{222+c}")
            A(f"  v_add_f32 v{222+c}, v{222+c}, v{218+c}")
            A(f"  v_cvt_pk_bf16_f32 v{222+c}, v{222+c}, v{222+c}")
        A("  v_cmp_gt_u32 vcc, 32, v0")
        A("  s_and_b64 exec, exec, vcc")
        A(f"  s_mov_b32 s61, {N*128}")
        for c in range(3):
            A(f"  buffer_store_short v{222+c}, v231, {sr(S_OUT,4)}, s61 offen offset:{2*c}")
        if STAMP and SSET != "K":
            A("  s_waitcnt vmcnt(0)")
            stamp(6)
            stamp(7, True, 'AP')
            A("  s_mov_b64 exec, 1")
            for i in range(8):
                A(f"  v_mov_b32 v{16+i}, s{70+2*i}")
            A(f"  v_mov_b32 v24, s{S_T}")
            A("  v_mov_b32 v25, s2")
            A(f"  s_lshl_b32 s61, s{S_G}, 6")
            A("  s_add_u32 s61, s61, 0x1000000")
            A("  v_mov_b32 v30, 0")
            A(f"  buffer_store_dwordx4 v[16:19], v30, {sr(S_WS,4)}, s61 offen")
            A(f"  buffer_store_dwordx4 v[20:23], v30, {sr(S_WS,4)}, s61 offen offset:16")
            A(f"  buffer_store_dwordx2 v[24:25], v30, {sr(S_WS,4)}, s61 offen offset:32")
    traces = [PRO + X0 + Y0 + X1 + Y1 + X0 + Y0 + X1 + Y1, X0 + Y0 + TAIL + EPI, X1 + Y1 + TAIL + EPI]
    while any([pad_trace(t) for t in traces]):
        pass
    emit(PRO)
    A("K2_LOOP:")
    emit(X0); emit(Y0); emit(X1); emit(Y1)
    A("K2_LOOPD:")
    emit(TAIL)
    emit(EPI)
    A("K2_END:")
    A("  s_endpgm")
    for l in SLOW:
        A(l)
    npad = sum(i.pre for i in X0 + Y0)
    nins = sum(1 for i in X0 + Y0 if classify(i.t))
    sys.stderr.write(f"tile instrs {nins}, pad states {npad}: " + ", ".join(f"{i.pre}@{i.t.split()[0]}" for i in X0 + Y0 if i.pre) + "\n")

LDS_MAIN = 163840
A(HEADER.rstrip("\n"))
A(f"; @launch kernel=egnn_sort_kernel grid=({NCH},1,1) block=(1024,1,1) lds={K1_LDS}")
A(f"; @launch kernel=gather_scatter__cheap_equivariant_egnn__graph_kernel grid=(256,1,1) block=(512,1,1) lds={LDS_MAIN}")
A('.amdgcn_target "amdgcn-amd-amdhsa--gfx950"')
A(".text")
k_sort()
k_main()
A('.section .rodata,"a"')
for nm, nv in (("egnn_sort_kernel", 80), ("gather_scatter__cheap_equivariant_egnn__graph_kernel", 256)):
    A(".p2align 6")
    A(f".amdhsa_kernel {nm}")
    A(f"  .amdhsa_next_free_vgpr {nv}")
    A("  .amdhsa_next_free_sgpr 102")
    A(f"  .amdhsa_accum_offset {nv}")
    A("  .amdhsa_group_segment_fixed_size 0")
    A("  .amdhsa_kernarg_size 88")
    A("  .amdhsa_user_sgpr_count 2")
    A("  .amdhsa_user_sgpr_kernarg_segment_ptr 1")
    A("  .amdhsa_system_sgpr_workgroup_id_x 1")
    A("  .amdhsa_float_denorm_mode_32 3")
    A(".end_amdhsa_kernel")
print("\n".join(render(out)))
```
